```python
import torch

def _softmax(x, axis=-1):
    return torch.softmax(x, dim=axis)
def _gelu(x):
    return torch.nn.functional.gelu(x, approximate="tanh")
def _silu(x):
    return torch.nn.functional.silu(x)
def _sigmoid(x):
    return torch.sigmoid(x)
def _layernorm(x, axis=-1, eps=1e-5):
    m = x.mean(dim=axis, keepdim=True)
    v = x.var(dim=axis, keepdim=True, unbiased=False)
    return (x - m) / torch.sqrt(v + eps)
def _scatter_add(tgt, idx, src, axis=0):
    return tgt.clone().index_add_(axis, idx, src)
def _segment_sum(src, seg, n):
    out = torch.zeros((n,) + src.shape[1:], dtype=src.dtype)
    return out.index_add_(0, seg, src)
def _pad(x, pw):
    flat = tuple(v for pair in reversed(pw) for v in pair)
    return torch.nn.functional.pad(x, flat)

kernel_name = 'recurrent_scan__compressed_kv_cla__glu_gated_reglu__decode'

def setup_inputs():

    _w = (lambda a: (lambda t: t.to(torch.bfloat16) if t.is_floating_point() else t)(torch.as_tensor(a)))
    def _A_setup():
        B, H, Sq, Sk, D, M = 2, 32, 1, 8192, 128, 512
        Dc = 4 * D
        return {
            "x": _w((lambda *s: torch.randn(*s, dtype=torch.bfloat16) * 0.05)(B, Sq, M)),
            "c_kv": _w((lambda *s: torch.randn(*s, dtype=torch.bfloat16) * 1.6)(B, Sk, Dc)),
            "w_q": _w((lambda *s: torch.randn(*s, dtype=torch.bfloat16) * 1.6)(M, H, D) * (M ** -0.5)),
            "w_uk": _w((lambda *s: torch.randn(*s, dtype=torch.bfloat16) * 1.6)(Dc, H, D) * (Dc ** -0.5)),
            "w_uv": _w((lambda *s: torch.randn(*s, dtype=torch.bfloat16) * 1.6)(Dc, H, D) * (Dc ** -0.5)),
            "w_o": _w((lambda *s: torch.randn(*s, dtype=torch.bfloat16) * 1.6)(H, D, M) * ((H * D) ** -0.5)),
        }
    _A_in = _A_setup()

    def _B_setup():
        B, S, D, F = 2, 1, 512, 1792
        return {
            "x": _w((lambda *s: torch.randn(*s, dtype=torch.bfloat16) * 0.05)(B, S, D)),
            "W_gate": _w((lambda *s: torch.randn(*s, dtype=torch.bfloat16) * 0.2)(D, F) * (2.0 / D) ** 0.5),
            "W_up": _w((lambda *s: torch.randn(*s, dtype=torch.bfloat16) * 0.2)(D, F) * (2.0 / D) ** 0.5),
            "W_down": _w((lambda *s: torch.randn(*s, dtype=torch.bfloat16) * 0.2)(F, D) * (1.0 / F) ** 0.5),
        }
    _B_in = _B_setup()

    return {
        "A_x": _A_in["x"],
        "A_c_kv": _A_in["c_kv"],
        "A_w_q": _A_in["w_q"],
        "A_w_uk": _A_in["w_uk"],
        "A_w_uv": _A_in["w_uv"],
        "A_w_o": _A_in["w_o"],
        "B_x": _B_in["x"],
        "B_W_gate": _B_in["W_gate"],
        "B_W_up": _B_in["W_up"],
        "B_W_down": _B_in["W_down"],
    }

def reference(A_x, A_c_kv, A_w_q, A_w_uk, A_w_uv, A_w_o, B_x, B_W_gate, B_W_up, B_W_down):
    def _A_ref(x, c_kv, w_q, w_uk, w_uv, w_o):
        B, Sq, M = x.shape[0], x.shape[1], x.shape[2]
        Sk = c_kv.shape[1]
        H, D = w_q.shape[1], w_q.shape[2]
        q = torch.einsum("bqm,mhd->bhqd", x, w_q)
        k = torch.einsum("bkc,chd->bhkd", c_kv, w_uk)
        v = torch.einsum("bkc,chd->bhkd", c_kv, w_uv)
        scores = torch.einsum("bhqd,bhkd->bhqk", q, k) * (D ** -0.5)
        off = Sk - Sq
        qi = torch.arange(Sq)[:, None]
        kj = torch.arange(Sk)[None, :]
        cmask = kj <= (qi + off)
        scores = torch.where(cmask[None, None], scores, -1e9)
        p = _softmax(scores, axis=-1)
        ctx = torch.einsum("bhqk,bhkd->bhqd", p, v)
        return torch.einsum("bhqd,hdm->bqm", ctx, w_o)

    def _B_ref(x, W_gate, W_up, W_down):
        gate = torch.einsum("bsd,df->bsf", x, W_gate)
        up = torch.einsum("bsd,df->bsf", x, W_up)
        gate = gate * (lambda x, dt: x.to(dt))(gate > 0, gate.dtype)
        h = gate * up
        return torch.einsum("bsf,fd->bsd", h, W_down)

    x = A_x
    xn = _layernorm(x, axis=-1)
    s = _A_ref(xn, A_c_kv, A_w_q, A_w_uk, A_w_uv, A_w_o)
    g = _silu(_B_ref(xn, B_W_gate, B_W_up, B_W_down))
    return x + s * g
```

```python
import re

TRANS = ("v_exp_f32", "v_log_f32", "v_rcp_f32", "v_rsq_f32", "v_sqrt_f32", "v_sin_f32", "v_cos_f32")


def _regs(tok):
    tok = tok.strip()
    neg = tok.lstrip("-")
    if neg.startswith("abs(") and neg.endswith(")"):
        neg = neg[4:-1]
    if neg.startswith("|") and neg.endswith("|"):
        neg = neg[1:-1]
    tok = neg
    m = re.fullmatch(r"([vsa])(\d+)", tok)
    if m:
        return {(m.group(1), int(m.group(2)))}
    m = re.fullmatch(r"([vsa])\[(\d+):(\d+)\]", tok)
    if m:
        return {(m.group(1), i) for i in range(int(m.group(2)), int(m.group(3)) + 1)}
    if tok in ("vcc", "vcc_lo", "vcc_hi"):
        return {("vcc", 0)}
    if tok in ("exec", "exec_lo", "exec_hi"):
        return {("exec", 0)}
    if tok == "m0":
        return {("m0", 0)}
    return set()


class Ins:
    __slots__ = ("text", "op", "kind", "wr", "rd", "passes", "srcc", "srcab", "dpp", "states", "wide_store_data", "lds_dma", "perm", "lane_rd")

    def __init__(self, text):
        self.text = text
        t = text.split(";")[0].strip()
        parts = t.split(None, 1)
        op = parts[0]
        self.op = op
        rest = parts[1] if len(parts) > 1 else ""
        ops = []
        depth = 0
        cur = ""
        for ch in rest:
            if ch == "[" or ch == "(":
                depth += 1
            if ch == "]" or ch == ")":
                depth -= 1
            if ch == "," and depth == 0:
                ops.append(cur.strip())
                cur = ""
            else:
                cur += ch
        if cur.strip():
            ops.append(cur.strip())
        mods = ""
        if ops:
            last = ops[-1].split(None, 1)
            ops[-1] = last[0]
            mods = last[1] if len(last) > 1 else ""
        self.wr = set()
        self.rd = set()
        self.passes = 0
        self.srcc = set()
        self.srcab = set()
        self.dpp = ("row_" in mods or "quad_perm" in mods or "_dpp" in op or "row_" in t or "quad_perm" in t)
        self.states = 1
        self.wide_store_data = set()
        self.lds_dma = False
        self.perm = op.startswith("v_permlane")
        self.lane_rd = op.startswith("v_readlane") or op.startswith("v_readfirstlane")
        R = [_regs(o) for o in ops]
        allr = set().union(*R) if R else set()
        if op == "s_nop":
            self.kind = "nop"
            self.states = int(ops[0], 0) + 1
        elif op.startswith("v_mfma"):
            self.kind = "mfma"
            self.wr = R[0]
            self.srcab = R[1] | R[2]
            self.srcc = R[3] if len(R) > 3 else set()
            self.rd = self.srcab | self.srcc
            if "32x32x16" in op:
                self.passes = 8
            elif "16x16x32" in op:
                self.passes = 4
            else:
                raise ValueError("unknown mfma " + op)
        elif op.startswith("v_"):
            self.kind = "valu"
            if op.startswith("v_cmp"):
                self.wr = R[0]
                self.rd = set().union(*R[1:])
                if op.startswith("v_cmpx"):
                    self.wr = self.wr | {("exec", 0)}
            elif self.perm and "swap" in op:
                self.wr = R[0] | R[1]
                self.rd = R[0] | R[1]
            elif op.startswith("v_add_co") or op.startswith("v_sub_co") or op.startswith("v_addc_co") or op.startswith("v_subb_co"):
                self.wr = R[0] | R[1]
                self.rd = set().union(*R[2:])
            elif op.startswith("v_fmac") or op.startswith("v_dot2c") or op.startswith("v_pk_fmac"):
                self.wr = R[0]
                self.rd = allr
            elif op.startswith("v_writelane"):
                self.wr = R[0]
                self.rd = allr
            else:
                self.wr = R[0]
                self.rd = set().union(*R[1:]) if len(R) > 1 else set()
                if op.startswith("v_cndmask") and len(R) == 3:
                    self.rd = self.rd | {("vcc", 0)}
                if self.dpp:
                    self.rd = self.rd | R[0]
        elif op.startswith("ds_"):
            self.kind = "ds"
            if op.startswith("ds_read") or op.startswith("ds_bpermute") or op.startswith("ds_permute") or op.startswith("ds_swizzle"):
                self.wr = R[0]
                self.rd = set().union(*R[1:])
            else:
                self.rd = allr
        elif op.startswith("buffer_") or op.startswith("global_") or op.startswith("flat_"):
            self.kind = "vmem"
            toks = mods.split()
            is_lds = (" lds" in (" " + mods)) or op.startswith("global_load_lds")
            if is_lds:
                self.lds_dma = True
                self.rd = allr | {("m0", 0)}
            elif "load" in op:
                self.wr = R[0]
                self.rd = set().union(*R[1:])
            elif "atomic" in op:
                self.rd = allr
                if "sc0" in toks:
                    self.wr = R[0]
            elif "store" in op:
                self.rd = allr
                if "x3" in op or "x4" in op:
                    if op.startswith("buffer_"):
                        self.wide_store_data = {r for r in R[0] if r[0] in "va"}
                    else:
                        self.wide_store_data = {r for r in R[1] if r[0] in "va"}
            else:
                self.rd = allr
        elif op.startswith("s_"):
            if op.startswith("s_load") or op.startswith("s_memtime") or op.startswith("s_memrealtime") or op.startswith("s_buffer_load"):
                self.kind = "smem"
                self.wr = R[0]
                self.rd = set().union(*R[1:]) if len(R) > 1 else set()
            elif op in ("s_waitcnt", "s_barrier", "s_endpgm", "s_sleep", "s_setprio") or op.startswith("s_cbranch") or op == "s_branch":
                self.kind = "sctl"
                self.rd = allr
            elif op.startswith("s_cmp") or op.startswith("s_bitcmp"):
                self.kind = "salu"
                self.rd = allr
            else:
                self.kind = "salu"
                self.wr = R[0]
                self.rd = set().union(*R[1:]) if len(R) > 1 else set()
                if "saveexec" in op:
                    self.wr = self.wr | {("exec", 0)}
        else:
            raise ValueError("unknown instruction: " + text)


def vg(s):
    return {r for r in s if r[0] in "va"}


def sg(s):
    return {r for r in s if r[0] in ("s", "vcc")}


def need(p, c):
    n = 0
    if p.kind == "valu":
        pw = vg(p.wr)
        if c.kind == "mfma" and (pw & c.rd):
            n = max(n, 2)
        if c.kind == "valu":
            if c.dpp and (pw & vg(c.rd)):
                n = max(n, 2)
            if c.perm and (pw & vg(c.rd)):
                n = max(n, 2)
            if c.lane_rd and (pw & vg(c.rd)):
                n = max(n, 1)
            if p.op.startswith(TRANS) and (pw & vg(c.rd)) and not c.op.startswith(TRANS):
                n = max(n, 1)
        if p.op.startswith(TRANS) and c.kind in ("vmem", "ds") and (pw & vg(c.rd)):
            n = max(n, 1)
        ps = sg(p.wr)
        if ps:
            if c.kind == "vmem" and (ps & sg(c.rd)):
                n = max(n, 5)
            if c.kind == "valu" and (ps & sg(c.rd)):
                n = max(n, 4 if (c.op.startswith("v_readlane") or c.op.startswith("v_writelane")) else 2)
            if c.kind in ("salu", "smem", "sctl") and (ps & sg(c.rd)):
                n = max(n, 2)
            if c.kind == "sctl" and c.op.startswith("s_cbranch_vcc") and ("vcc", 0) in ps:
                n = max(n, 2)
        if ("exec", 0) in p.wr:
            if c.kind in ("valu", "mfma"):
                n = max(n, 5)
    if p.kind == "mfma":
        d = p.wr
        big = {4: 8, 8: 12}[p.passes]
        if c.kind == "valu" and (d & (vg(c.rd) | vg(c.wr))):
            n = max(n, big)
        if c.kind in ("vmem", "ds") and (d & (vg(c.rd) | vg(c.wr))):
            n = max(n, big)
        if c.kind == "mfma":
            if d & c.srcab:
                n = max(n, big)
            if d & c.srcc:
                if not (c.srcc == d and c.passes == p.passes):
                    n = max(n, {4: 6, 8: 10}[p.passes])
            if (d & c.wr) and not (c.wr == d and c.srcc == d and c.passes == p.passes):
                n = max(n, {4: 6, 8: 10}[p.passes])
        if c.kind == "valu" and (p.srcc & vg(c.wr)):
            n = max(n, {4: 3, 8: 7}[p.passes])
        if c.kind in ("vmem", "ds") and (p.srcc & vg(c.wr)):
            n = max(n, {4: 3, 8: 7}[p.passes])
    if p.kind == "salu":
        if ("m0", 0) in p.wr and (c.lds_dma or c.op.startswith("s_sendmsg")):
            n = max(n, 1)
        if ("exec", 0) in p.wr and c.kind == "mfma":
            n = max(n, 4)
        if ("exec", 0) in p.wr and c.kind == "valu" and c.dpp:
            n = max(n, 5)
    if p.kind == "vmem" and p.wide_store_data:
        if c.kind in ("valu", "mfma") and (p.wide_store_data & vg(c.wr)):
            n = max(n, 2)
        if c.kind in ("ds", "vmem") and (p.wide_store_data & vg(c.wr)):
            n = max(n, 2)
    return n


class Asm:
    def __init__(self):
        self.items = []
        self.hist = []
        self.nops_inserted = 0

    def raw(self, s):
        self.items.append(s)

    def label(self, name):
        self.items.append(name + ":")

    def comment(self, s):
        self.items.append("    ; " + s)

    def reset_hazards(self):
        self.hist = []

    def drain(self):
        self("s_nop 15")

    def __call__(self, text):
        for line in text.split("\n"):
            line = line.strip()
            if not line or line.startswith(";"):
                continue
            if line.endswith(":") and " " not in line:
                self.label(line[:-1])
                continue
            ins = Ins(line)
            dist = 0
            short = 0
            for p in reversed(self.hist):
                nd = need(p, ins)
                if nd - dist > short:
                    short = nd - dist
                dist += p.states
                if dist > 24:
                    break
            while short > 0:
                k = min(short, 16)
                nop = Ins("s_nop %d" % (k - 1))
                self.items.append(nop)
                self.hist.append(nop)
                self.nops_inserted += 1
                short -= k
            self.items.append(ins)
            self.hist.append(ins)
            if len(self.hist) > 64:
                self.hist = self.hist[-40:]

    def text(self):
        out = []
        for it in self.items:
            if isinstance(it, Ins):
                out.append("    " + it.text)
            else:
                out.append(it)
        return "\n".join(out) + "\n"
```

```python
import sys
from asmlib import Asm

NAME = "recurrent_scan__compressed_kv_cla__glu_gated_reglu__decode"

WS_QA = 0x000000
WS_GU = 0x010000
WS_LSE = 0x030000
WS_FLAG = 0x038000
WS_SP = 0x040000
WS_YP = 0x0C0000
WS_ST = 0x140000
WS_OP = 0x200000
WS_END = 0x600000

P_X, P_KV, P_WQ, P_WUK, P_WUV, P_WO, P_BX, P_WG = 4, 6, 8, 10, 12, 14, 16, 18
P_WU, P_WD, P_OUT, P_DBG, P_WS = 20, 22, 24, 26, 28
S_WAVE = 30
S_IDX = 31
SRD_A, SRD_B, SRD_C, SRD_D, SRD_E = 32, 36, 40, 44, 48

QSCALE = (128 ** -0.5) * 1.4426950408889634

OPT = dict(nt_w=True, nt_kv=True, stamps=False)


def f2u(x):
    import struct
    return "0x%08x" % struct.unpack("<I", struct.pack("<f", x))[0]


def vr(n, k=4):
    return "v[%d:%d]" % (n, n + k - 1) if k > 1 else "v%d" % n


def sr(n, k=4):
    return "s[%d:%d]" % (n, n + k - 1)


def load_ptrs(a):
    a("s_load_dwordx16 s[4:19], s[0:1], 0")
    a("s_load_dwordx8 s[20:27], s[0:1], 64")
    a("s_load_dwordx2 s[28:29], s[0:1], 96")


def srd(a, dst, ptr, size, off=0):
    if off:
        a(f"s_add_u32 s{dst}, s{ptr}, {off}")
        a(f"s_addc_u32 s{dst+1}, s{ptr+1}, 0")
    else:
        a(f"s_mov_b32 s{dst}, s{ptr}")
        a(f"s_mov_b32 s{dst+1}, s{ptr+1}")
    a(f"s_mov_b32 s{dst+2}, {size}")
    a(f"s_mov_b32 s{dst+3}, 0x20000")


def lane_setup(a):
    a("v_lshrrev_b32 v2, 6, v0")
    a("v_and_b32 v1, 63, v0")
    a(f"v_readfirstlane_b32 s{S_WAVE}, v2")
    a("v_and_b32 v2, 15, v1")
    a("v_lshrrev_b32 v3, 4, v1")


def allreduce(a, op, regs, tmps):
    for dpp in ["quad_perm:[1,0,3,2]", "quad_perm:[2,3,0,1]", "row_half_mirror", "row_mirror"]:
        for r in regs:
            a(f"{op}_dpp v{r}, v{r}, v{r} {dpp} row_mask:0xf bank_mask:0xf")
    for sw in (16, 32):
        for r, t in zip(regs, tmps):
            a(f"v_mov_b32 v{t}, v{r}")
        for r, t in zip(regs, tmps):
            a(f"v_permlane{sw}_swap_b32 v{r}, v{t}")
        for r, t in zip(regs, tmps):
            a(f"{op} v{r}, v{r}, v{t}")


def make_masks(a, m0, t0, t1):
    a(f"v_and_b32 v{t0}, 1, v1")
    a(f"v_cmp_eq_u32 vcc, 1, v{t0}")
    a(f"v_mov_b32 v{t0}, 0xffff")
    a(f"v_mov_b32 v{t1}, 0xffff0000")
    a(f"v_cndmask_b32 v{t0}, v{t0}, v{t1}, vcc")
    a(f"v_bfe_u32 v{t1}, v1, 1, 2")
    for k in range(4):
        a(f"v_cmp_eq_u32 vcc, {k}, v{t1}")
        a(f"v_cndmask_b32 v{m0+k}, 0, v{t0}, vcc")


def ln_stats(a, x0, x1, u0, mean, rstd, t):
    for b, x in enumerate((x0, x1)):
        for k in range(4):
            a(f"v_lshlrev_b32 v{u0+8*b+2*k}, 16, v{x+k}")
            a(f"v_and_b32 v{u0+8*b+2*k+1}, 0xffff0000, v{x+k}")
    s0, s1, q0, q1, ta, tb = t, t + 1, t + 2, t + 3, t + 4, t + 5
    for b, s in enumerate((s0, s1)):
        u = u0 + 8 * b
        a(f"v_add_f32 v{s}, v{u}, v{u+1}")
        for k in range(2, 8):
            a(f"v_add_f32 v{s}, v{s}, v{u+k}")
    allreduce(a, "v_add_f32", [s0, s1], [ta, tb])
    a(f"v_mul_f32 v{s0}, {f2u(1.0/512)}, v{s0}")
    a(f"v_mul_f32 v{s1}, {f2u(1.0/512)}, v{s1}")
    for b, (s, q) in enumerate(((s0, q0), (s1, q1))):
        u = u0 + 8 * b
        for k in range(8):
            a(f"v_sub_f32 v{u+k}, v{u+k}, v{s}")
        a(f"v_mul_f32 v{q}, v{u}, v{u}")
        for k in range(1, 8):
            a(f"v_fmac_f32 v{q}, v{u+k}, v{u+k}")
    allreduce(a, "v_add_f32", [q0, q1], [ta, tb])
    a(f"v_mov_b32 v{ta}, {f2u(1e-5)}")
    a(f"v_mov_b32 v{tb}, {f2u(1.0/512)}")
    a(f"v_fma_f32 v{q0}, v{q0}, v{tb}, v{ta}")
    a(f"v_fma_f32 v{q1}, v{q1}, v{tb}, v{ta}")
    a(f"v_rsq_f32 v{q0}, v{q0}")
    a(f"v_rsq_f32 v{q1}, v{q1}")
    a(f"v_and_b32 v{ta}, 8, v1")
    a(f"v_cmp_ne_u32 vcc, 0, v{ta}")
    a(f"v_cndmask_b32 v{mean}, v{s0}, v{s1}, vcc")
    a(f"v_cndmask_b32 v{rstd}, v{q0}, v{q1}, vcc")


def norm_dup(a, src, n, dst, mean, rstd, t):
    for k in range(n // 2):
        a(f"v_lshlrev_b32 v{t}, 16, v{src+k}")
        a(f"v_and_b32 v{t+1}, 0xffff0000, v{src+k}")
        a(f"v_sub_f32 v{t}, v{t}, v{mean}")
        a(f"v_sub_f32 v{t+1}, v{t+1}, v{mean}")
        a(f"v_mul_f32 v{t}, v{t}, v{rstd}")
        a(f"v_mul_f32 v{t+1}, v{t+1}, v{rstd}")
        a(f"v_cvt_pk_bf16_f32 v{dst+2*k}, v{t}, v{t}")
        a(f"v_cvt_pk_bf16_f32 v{dst+2*k+1}, v{t+1}, v{t+1}")


def afrags(a, dup, n, masks, dst):
    for i in range(n):
        for k in range(4):
            a(f"v_and_b32 v{dst+4*i+k}, v{dup+i}, v{masks+k}")


def reduce8(a, rd_addr, base_off, dst, tmp, n=8, stride=1024):
    for k in range(n):
        a(f"ds_read_b128 {vr(tmp+4*k)}, v{rd_addr} offset:{base_off + k*stride}")
    a("s_waitcnt lgkmcnt(0)")
    cur = [tmp + 4 * k for k in range(n)]
    while len(cur) > 2:
        nxt = []
        for p in range(0, len(cur), 2):
            for r in range(4):
                a(f"v_add_f32 v{cur[p]+r}, v{cur[p]+r}, v{cur[p+1]+r}")
            nxt.append(cur[p])
        cur = nxt
    for r in range(4):
        if len(cur) == 2:
            a(f"v_add_f32 v{dst+r}, v{cur[0]+r}, v{cur[1]+r}")
        else:
            a(f"v_mov_b32 v{dst+r}, v{cur[0]+r}")


def NT(flag):
    return " nt" if flag else ""


def stamp(a, k, nstamp=8):
    if not OPT["stamps"]:
        return
    lab = f"Lst{a.uid()}"
    a(f"s_memrealtime s[60:61]")
    a(f"s_cmp_lg_u32 s{S_WAVE}, 0")
    a(f"s_cbranch_scc1 {lab}")
    a("s_waitcnt lgkmcnt(0)")
    a(f"s_lshl_b32 s62, s2, 6")
    a(f"s_add_u32 s62, s62, {WS_ST + 8*k}")
    a(f"s_add_u32 s64, s{P_WS}, s62")
    a(f"s_addc_u32 s65, s{P_WS+1}, 0")
    a("v_mov_b32 v252, s60")
    a("v_mov_b32 v253, s61")
    a("v_mov_b32 v254, 0")
    a("global_store_dwordx2 v254, v[252:253], s[64:65]")
    a.label(lab)
    a("s_nop 0")


def role_q(a, idx):
    S_H, S_QQ = 52, 53
    a(f"s_and_b32 s{S_H}, s{idx}, 7")
    a(f"s_lshr_b32 s54, s{idx}, 5")
    a(f"s_lshl_b32 s54, s54, 3")
    a(f"s_add_u32 s{S_H}, s{S_H}, s54")
    a(f"s_lshr_b32 s{S_QQ}, s{idx}, 3")
    a(f"s_and_b32 s{S_QQ}, s{S_QQ}, 3")
    lane_setup(a)
    a("v_lshlrev_b32 v4, 4, v1")
    a("v_and_b32 v5, 8, v1")
    a("v_lshlrev_b32 v5, 7, v5")
    a("v_lshl_add_u32 v5, v3, 5, v5")
    a("v_lshlrev_b32 v6, 17, v3")
    a("v_lshl_add_u32 v6, v2, 4, v6")
    a("v_lshlrev_b32 v7, 13, v2")
    a("v_lshl_add_u32 v7, v3, 4, v7")
    a(f"s_lshl_b32 s55, s{S_WAVE}, 7")
    a(f"s_lshl_b32 s56, s{S_WAVE}, 19")
    a(f"s_lshl_b32 s57, s{S_H}, 8")
    a("s_add_u32 s56, s56, s57")
    a(f"s_lshl_b32 s58, s{S_QQ}, 20")
    a(f"s_lshl_b32 s59, s{S_WAVE}, 17")
    a("s_add_u32 s58, s58, s59")
    a("s_add_u32 s58, s58, s57")
    a("s_waitcnt lgkmcnt(0)")
    srd(a, SRD_A, P_X, 2048)
    srd(a, SRD_B, P_WQ, 4194304)
    srd(a, SRD_C, P_WUK, 4194304)
    a(f"buffer_load_dwordx4 v[8:11], v4, {sr(SRD_A)}, 0 offen")
    a(f"buffer_load_dwordx4 v[12:15], v4, {sr(SRD_A)}, 0 offen offset:1024")
    a(f"buffer_load_dwordx4 v[16:19], v5, {sr(SRD_A)}, s55 offen")
    a(f"buffer_load_dwordx4 v[20:23], v5, {sr(SRD_A)}, s55 offen offset:16")
    WQ, WUK, AF = 64, 128, 160
    for i in range(16):
        a(f"buffer_load_dwordx4 {vr(WQ+4*i)}, v6, {sr(SRD_B)}, s56 offen{NT(OPT.get('nt_wq', False))}")
        if i < 15:
            a("s_add_u32 s56, s56, 8192")
    for s in range(4):
        a(f"buffer_load_dwordx4 {vr(WUK+4*s)}, v7, {sr(SRD_C)}, s58 offen offset:{64*s}{NT(OPT['nt_w'])}")
    MASK = 24
    make_masks(a, MASK, 28, 29)
    a("s_waitcnt vmcnt(22)")
    MEAN, RSTD = 30, 31
    ln_stats(a, 8, 12, 32, MEAN, RSTD, 48)
    a("s_waitcnt vmcnt(20)")
    DUP = 32
    norm_dup(a, 16, 16, DUP, MEAN, RSTD, 48)
    afrags(a, DUP, 16, MASK, AF)
    ACC = 24
    ACC = 52
    for i in range(16):
        a(f"s_waitcnt vmcnt({19-i})")
        c = "0" if i == 0 else vr(ACC)
        a(f"v_mfma_f32_16x16x32_bf16 {vr(ACC)}, {vr(AF+4*i)}, {vr(WQ+4*i)}, {c}")
    a(f"s_lshl_b32 s59, s{S_WAVE}, 10")
    a("v_add_u32 v8, s59, v4")
    a(f"ds_write_b128 v8, {vr(ACC)}")
    a("s_waitcnt lgkmcnt(0)")
    a("s_barrier")
    reduce8(a, 4, 0, ACC, 64)
    a(f"v_cvt_pk_bf16_f32 v{ACC}, v{ACC}, v{ACC+1}")
    a(f"v_cvt_pk_bf16_f32 v{ACC+1}, v{ACC+2}, v{ACC+3}")
    a(f"s_lshl_b32 s59, s{S_WAVE}, 9")
    a("s_add_u32 s59, s59, 8192")
    a("v_lshrrev_b32 v9, 5, v1")
    a("v_lshlrev_b32 v9, 8, v9")
    a("v_lshl_add_u32 v9, v2, 4, v9")
    a("v_and_b32 v10, 1, v3")
    a("v_lshl_add_u32 v9, v10, 3, v9")
    a("v_add_u32 v9, s59, v9")
    a(f"ds_write_b64 v9, v[{ACC}:{ACC+1}]")
    a("v_and_b32 v10, 1, v1")
    a("v_lshlrev_b32 v10, 8, v10")
    a("v_lshl_add_u32 v10, v3, 4, v10")
    a("v_add_u32 v10, s59, v10")
    a("s_waitcnt lgkmcnt(0)")
    QF = 64
    for s in range(4):
        a(f"ds_read_b128 {vr(QF+4*s)}, v10 offset:{64*s}")
    a("s_waitcnt vmcnt(0) lgkmcnt(0)")
    ACC2 = 56
    for s in range(4):
        c = "0" if s == 0 else vr(ACC2)
        a(f"v_mfma_f32_16x16x32_bf16 {vr(ACC2)}, {vr(WUK+4*s)}, {vr(QF+4*s)}, {c}")
    a(f"s_mov_b32 s59, {f2u(QSCALE)}")
    for r in range(4):
        a(f"v_mul_f32 v{ACC2+r}, s59, v{ACC2+r}")
    a(f"v_cvt_pk_bf16_f32 v{ACC2}, v{ACC2}, v{ACC2+1}")
    a(f"v_cvt_pk_bf16_f32 v{ACC2+1}, v{ACC2+2}, v{ACC2+3}")
    a(f"s_lshl_b32 s59, s{S_WAVE}, 5")
    a("s_add_u32 s59, s59, 12288")
    a("v_lshlrev_b32 v9, 8, v2")
    a("v_lshl_add_u32 v9, v3, 3, v9")
    a("v_add_u32 v9, s59, v9")
    a("v_cmp_gt_u32 vcc, 2, v2")
    a("s_and_saveexec_b64 s[60:61], vcc")
    a(f"ds_write_b64 v9, v[{ACC2}:{ACC2+1}]")
    a("s_mov_b64 exec, s[60:61]")
    a("s_waitcnt lgkmcnt(0)")
    a("s_barrier")
    lab = f"Lq_done{a.uid()}"
    a(f"s_cmp_lg_u32 s{S_WAVE}, 0")
    a(f"s_cbranch_scc1 {lab}")
    srd(a, SRD_D, P_WS, 65536, WS_QA)
    a(f"ds_read_b128 v[8:11], v4 offset:12288")
    a("v_lshlrev_b32 v12, 15, v3")
    a("v_lshl_add_u32 v12, v2, 4, v12")
    a(f"s_lshl_b32 s59, s{S_H}, 10")
    a(f"s_lshl_b32 s57, s{S_QQ}, 8")
    a("s_add_u32 s59, s59, s57")
    a("v_cmp_gt_u32 vcc, 32, v1")
    a("s_and_saveexec_b64 s[60:61], vcc")
    a("s_waitcnt lgkmcnt(0)")
    a(f"buffer_store_dwordx4 v[8:11], v12, {sr(SRD_D)}, s59 offen")
    a("s_mov_b64 exec, s[60:61]")
    a.label(lab)


def role_gu(a, idx):
    S_MAT, S_T, S_RQ = 52, 53, 54
    a(f"s_cmp_ge_u32 s{idx}, 56")
    a(f"s_cselect_b32 s{S_MAT}, 1, 0")
    a(f"s_mul_i32 s55, s{S_MAT}, 56")
    a(f"s_sub_u32 s55, s{idx}, s55")
    a(f"s_lshr_b32 s{S_T}, s55, 2")
    a(f"s_and_b32 s{S_RQ}, s55, 3")
    lane_setup(a)
    a("v_lshlrev_b32 v4, 4, v1")
    a("v_and_b32 v5, 8, v1")
    a("v_lshlrev_b32 v5, 7, v5")
    a("v_lshl_add_u32 v5, v3, 3, v5")
    a("v_mul_u32_u24 v6, 14336, v3")
    a("v_lshl_add_u32 v6, v2, 4, v6")
    a(f"s_lshl_b32 s55, s{S_RQ}, 7")
    a(f"s_lshl_b32 s56, s{S_WAVE}, 4")
    a("s_add_u32 s55, s55, s56")
    a("s_mul_i32 s56, s55, 3584")
    a(f"s_lshl_b32 s57, s{S_T}, 8")
    a("s_add_u32 s56, s56, s57")
    a("s_lshl_b32 s55, s55, 1")
    a("s_waitcnt lgkmcnt(0)")
    srd(a, SRD_A, P_X, 2048)
    a(f"s_cmp_eq_u32 s{S_MAT}, 0")
    a(f"s_cselect_b32 s{SRD_B}, s{P_WG}, s{P_WU}")
    a(f"s_cselect_b32 s{SRD_B+1}, s{P_WG+1}, s{P_WU+1}")
    a(f"s_mov_b32 s{SRD_B+2}, {512*3584}")
    a(f"s_mov_b32 s{SRD_B+3}, 0x20000")
    a(f"buffer_load_dwordx4 v[8:11], v4, {sr(SRD_A)}, 0 offen")
    a(f"buffer_load_dwordx4 v[12:15], v4, {sr(SRD_A)}, 0 offen offset:1024")
    a(f"buffer_load_dwordx2 v[16:17], v5, {sr(SRD_A)}, s55 offen")
    W, AF = 64, 96
    for i in range(4):
        a(f"buffer_load_dwordx4 {vr(W+4*i)}, v6, {sr(SRD_B)}, s56 offen{NT(OPT['nt_w'])}")
        if i < 3:
            a("s_add_u32 s56, s56, 3584")
    MASK = 24
    make_masks(a, MASK, 28, 29)
    a("s_waitcnt vmcnt(5)")
    MEAN, RSTD = 30, 31
    ln_stats(a, 8, 12, 32, MEAN, RSTD, 48)
    a("s_waitcnt vmcnt(4)")
    DUP = 32
    norm_dup(a, 16, 4, DUP, MEAN, RSTD, 48)
    afrags(a, DUP, 4, MASK, AF)
    ACC = 52
    for i in range(4):
        a(f"s_waitcnt vmcnt({3-i})")
        c = "0" if i == 0 else vr(ACC)
        a(f"v_mfma_f32_16x16x32_bf16 {vr(ACC)}, {vr(AF+4*i)}, {vr(W+4*i)}, {c}")
    a(f"s_lshl_b32 s59, s{S_WAVE}, 10")
    a("v_add_u32 v8, s59, v4")
    a(f"ds_write_b128 v8, {vr(ACC)}")
    a("s_waitcnt lgkmcnt(0)")
    a("s_barrier")
    lab = f"Lgu_done{a.uid()}"
    a(f"s_cmp_lg_u32 s{S_WAVE}, 0")
    a(f"s_cbranch_scc1 {lab}")
    reduce8(a, 4, 0, ACC, 64)
    srd(a, SRD_D, P_WS, 4 * 2 * 2 * 7168, WS_GU)
    a("v_lshrrev_b32 v9, 5, v1")
    a("v_mul_u32_u24 v9, 14336, v9")
    a("v_lshl_add_u32 v9, v2, 5, v9")
    a("v_and_b32 v10, 1, v3")
    a("v_lshl_add_u32 v9, v10, 4, v9")
    a(f"s_mul_i32 s59, s{S_RQ}, {4*7168}")
    a(f"s_mul_i32 s57, s{S_MAT}, 7168")
    a("s_add_u32 s59, s59, s57")
    a(f"s_lshl_b32 s57, s{S_T}, 9")
    a("s_add_u32 s59, s59, s57")
    a(f"buffer_store_dwordx4 {vr(ACC)}, v9, {sr(SRD_D)}, s59 offen")
    a.label(lab)


def role_down(a, idx):
    lane_setup(a)
    a(f"s_and_b32 s52, s{S_WAVE}, 3")
    a(f"s_lshr_b32 s53, s{S_WAVE}, 2")
    a("v_lshlrev_b32 v4, 4, v1")
    a("v_bfe_u32 v5, v1, 3, 1")
    a("v_mul_u32_u24 v5, 14336, v5")
    a("v_lshl_add_u32 v5, v3, 3, v5")
    a(f"s_lshl_b32 s54, s{idx}, 4")
    a("s_lshl_b32 s55, s53, 3")
    a("s_add_u32 s54, s54, s55")
    a("s_lshl_b32 s55, s54, 2")
    a("s_lshl_b32 s56, s54, 10")
    a("s_lshl_b32 s57, s52, 8")
    a("s_add_u32 s56, s56, s57")
    a("v_lshlrev_b32 v6, 11, v3")
    a("v_lshl_add_u32 v6, v2, 4, v6")
    a("s_waitcnt lgkmcnt(0)")
    srd(a, SRD_A, P_WS, 4 * 2 * 2 * 7168, WS_GU)
    srd(a, SRD_B, P_WD, 1792 * 1024)
    W = 64
    for i in range(2):
        a(f"buffer_load_dwordx4 {vr(W+4*i)}, v6, {sr(SRD_B)}, s56 offen offset:{1024*i}{NT(OPT['nt_w'])}")
    G = 32
    for rq in range(4):
        for mat in range(2):
            a(f"buffer_load_dwordx2 v[{G+4*rq+2*mat}:{G+4*rq+2*mat+1}], v5, {sr(SRD_A)}, s55 offen")
            if not (rq == 3 and mat == 1):
                a("s_add_u32 s55, s55, %d" % (7168 if mat == 0 else 28672 - 7168))
    MASK = 24
    make_masks(a, MASK, 28, 29)
    a("s_waitcnt vmcnt(0)")
    for k in range(4):
        a(f"v_add_f32 v{G+k}, v{G+k}, v{G+4+k}")
        a(f"v_add_f32 v{G+8+k}, v{G+8+k}, v{G+12+k}")
    for k in range(4):
        a(f"v_add_f32 v{G+k}, v{G+k}, v{G+8+k}")
    for i in range(2):
        a(f"v_max_f32 v{G+i}, 0, v{G+i}")
        a(f"v_mul_f32 v{G+i}, v{G+i}, v{G+2+i}")
        a(f"v_cvt_pk_bf16_f32 v{G+i}, v{G+i}, v{G+i}")
    AF = 96
    afrags(a, G, 2, MASK, AF)
    ACC = 52
    for i in range(2):
        c = "0" if i == 0 else vr(ACC)
        a(f"v_mfma_f32_16x16x32_bf16 {vr(ACC)}, {vr(AF+4*i)}, {vr(W+4*i)}, {c}")
    a(f"s_lshl_b32 s59, s{S_WAVE}, 10")
    a("v_add_u32 v8, s59, v4")
    a(f"ds_write_b128 v8, {vr(ACC)}")
    a("s_waitcnt lgkmcnt(0)")
    a("s_barrier")
    lab = f"Ldn_done{a.uid()}"
    a(f"s_cmp_ge_u32 s{S_WAVE}, 4")
    a(f"s_cbranch_scc1 {lab}")
    reduce8(a, 8, 0, ACC, 64, n=2, stride=4096)
    srd(a, SRD_D, P_WS, 112 * 4096, WS_YP)
    a("v_lshrrev_b32 v9, 5, v1")
    a("v_lshlrev_b32 v9, 11, v9")
    a("v_lshl_add_u32 v9, v2, 5, v9")
    a("v_and_b32 v10, 1, v3")
    a("v_lshl_add_u32 v9, v10, 4, v9")
    a(f"s_lshl_b32 s59, s{idx}, 12")
    a("s_lshl_b32 s57, s52, 9")
    a("s_add_u32 s59, s59, s57")
    a(f"buffer_store_dwordx4 {vr(ACC)}, v9, {sr(SRD_D)}, s59 offen")
    a.label(lab)


LDS_KV = 0
LDS_SC = 131072
LDS_SX = LDS_SC
LDS_PB = LDS_SC + 16384
LDS_MX = LDS_SC + 24576
LDS_LS = LDS_SC + 25600


def role_att(a, idx):
    S_B, S_SP = 52, 53
    a(f"s_lshr_b32 s{S_B}, s{idx}, 6")
    a(f"s_and_b32 s{S_SP}, s{idx}, 63")
    lane_setup(a)
    a("v_lshlrev_b32 v4, 4, v1")
    a(f"s_lshl_b32 s54, s{idx}, 17")
    a("s_waitcnt lgkmcnt(0)")
    a(f"s_add_u32 s{SRD_A}, s{P_KV}, s54")
    a(f"s_addc_u32 s{SRD_A+1}, s{P_KV+1}, 0")
    a(f"s_mov_b32 s{SRD_A+2}, 131072")
    a(f"s_mov_b32 s{SRD_A+3}, 0x20000")
    a(f"s_lshl_b32 s54, s{S_B}, 15")
    a(f"s_add_u32 s{SRD_B}, s{P_WS}, s54")
    a(f"s_addc_u32 s{SRD_B+1}, s{P_WS+1}, 0")
    a(f"s_mov_b32 s{SRD_B+2}, 32768")
    a(f"s_mov_b32 s{SRD_B+3}, 0x20000")
    l_q = f"Latt_q{a.uid()}"
    l_loop = f"Latt_kv{a.uid()}"
    l_join = f"Latt_join{a.uid()}"
    a(f"s_cmp_eq_u32 s{S_WAVE}, 7")
    a(f"s_cbranch_scc1 {l_q}")
    a(f"s_mov_b32 s54, s{S_WAVE}")
    a.label(l_loop)
    a("s_and_b32 s55, s54, 3")
    a("s_lshl_b32 s55, s55, 6")
    a("s_bfe_u32 s56, s54, 0x20002")
    a("s_lshl_b32 s56, s56, 4")
    a("s_or_b32 s55, s55, s56")
    a("s_lshl_b32 s56, s54, 10")
    a("s_or_b32 s55, s55, s56")
    a("s_mov_b32 m0, s56")
    a("v_xor_b32 v5, s55, v4")
    a(f"buffer_load_dwordx4 v5, {sr(SRD_A)}, 0 offen{NT(OPT['nt_kv'])} lds")
    a("s_add_u32 s54, s54, 7")
    a("s_cmp_lt_u32 s54, 128")
    a(f"s_cbranch_scc1 {l_loop}")
    a(f"s_branch {l_join}")
    a.label(l_q)
    for hd in range(32):
        f = ((hd & 3) << 2) | ((hd >> 2) & 3)
        a(f"s_mov_b32 m0, {LDS_SC + hd*1024}")
        a(f"v_xor_b32 v5, {(f << 4) | (hd << 10)}, v4")
        a(f"buffer_load_dwordx4 v5, {sr(SRD_B)}, 0 offen lds")
    a.label(l_join)
    a(f"s_lshr_b32 s54, s{S_WAVE}, 1")
    a(f"s_and_b32 s55, s{S_WAVE}, 1")
    a("v_and_b32 v6, 31, v1")
    a("v_lshrrev_b32 v7, 5, v1")
    a("v_and_b32 v8, 3, v1")
    a("v_lshlrev_b32 v8, 2, v8")
    a("v_bfe_u32 v9, v1, 2, 2")
    a("v_or_b32 v8, v8, v9")
    a("v_xor_b32 v8, v8, v7")
    a("v_lshlrev_b32 v8, 4, v8")
    a("v_lshl_add_u32 v9, v6, 10, v8")
    a("s_lshl_b32 s56, s55, 9")
    a(f"s_add_u32 s57, s56, {LDS_SC}")
    a("v_add_u32 v9, s57, v9")
    a("s_lshl_b32 s57, s55, 4")
    a("v_xor_b32 v10, s57, v6")
    a("v_lshl_add_u32 v10, v10, 10, v8")
    a("s_lshl_b32 s57, s54, 15")
    a("s_add_u32 s57, s57, s56")
    a("v_add_u32 v10, s57, v10")
    AQ, AK = 16, 24
    for s in range(8):
        a(f"v_xor_b32 v{AQ+s}, {32*s}, v9")
        a(f"v_xor_b32 v{AK+s}, {32*s}, v10")
    a("s_waitcnt vmcnt(0)")
    a("s_barrier")
    QF = 64
    for s in range(16):
        a(f"ds_read_b128 {vr(QF+4*s)}, v{AQ+(s&7)} offset:{256*(s>>3)}")
    a("s_waitcnt lgkmcnt(0)")
    a("s_barrier")
    KF = 128
    ACC = 32
    for s in range(16):
        a(f"ds_read_b128 {vr(KF+4*s)}, v{AK+(s&7)} offset:{256*(s>>3)}")
    for s in range(16):
        a(f"s_waitcnt lgkmcnt({15-s})")
        c = "0" if s == 0 else vr(ACC, 16)
        a(f"v_mfma_f32_32x32x16_bf16 {vr(ACC,16)}, {vr(KF+4*s)}, {vr(QF+4*s)}, {c}")
    a(f"s_lshl_b32 s56, s{S_WAVE}, 11")
    a(f"s_add_u32 s57, s56, {LDS_SX}")
    a("v_add_u32 v11, s57, v4")
    a("s_xor_b32 s57, s57, 2048")
    a("v_add_u32 v12, s57, v4")
    a(f"ds_write_b128 v11, {vr(ACC+8)}")
    a(f"ds_write_b128 v11, {vr(ACC+12)} offset:1024")
    a("s_waitcnt lgkmcnt(0)")
    a("s_barrier")
    a(f"ds_read_b128 {vr(48)}, v12")
    a(f"ds_read_b128 {vr(52)}, v12 offset:1024")
    a("s_waitcnt lgkmcnt(0)")
    for r in range(8):
        a(f"v_add_f32 v{ACC+r}, v{ACC+r}, v{48+r}")
    a(f"v_max3_f32 v48, v{ACC}, v{ACC+1}, v{ACC+2}")
    a(f"v_max3_f32 v49, v{ACC+3}, v{ACC+4}, v{ACC+5}")
    a(f"v_max3_f32 v48, v48, v{ACC+6}, v{ACC+7}")
    a("v_max_f32 v48, v48, v49")
    a("v_mov_b32 v49, v48")
    a("v_permlane32_swap_b32 v48, v49")
    a("v_max_f32 v48, v48, v49")
    a(f"s_lshl_b32 s56, s{S_WAVE}, 2")
    a(f"s_add_u32 s57, s56, {LDS_MX}")
    a("v_lshlrev_b32 v13, 5, v6")
    a("v_add_u32 v14, s57, v13")
    a("ds_write_b32 v14, v48")
    a(f"v_add_u32 v15, {LDS_MX}, v13")
    a("s_waitcnt lgkmcnt(0)")
    a("s_barrier")
    a(f"ds_read_b128 {vr(48)}, v15")
    a(f"ds_read_b128 {vr(52)}, v15 offset:16")
    a("s_waitcnt lgkmcnt(0)")
    a("v_max3_f32 v48, v48, v49, v50")
    a("v_max3_f32 v52, v52, v53, v54")
    a("v_max3_f32 v48, v48, v51, v55")
    a("v_max_f32 v28, v48, v52")
    for r in range(8):
        a(f"v_sub_f32 v{ACC+r}, v{ACC+r}, v28")
    for r in range(8):
        a(f"v_exp_f32 v{ACC+r}, v{ACC+r}")
    a(f"v_add_f32 v48, v{ACC}, v{ACC+1}")
    a(f"v_add_f32 v49, v{ACC+2}, v{ACC+3}")
    a(f"v_add_f32 v50, v{ACC+4}, v{ACC+5}")
    a(f"v_add_f32 v51, v{ACC+6}, v{ACC+7}")
    a("v_add_f32 v48, v48, v49")
    a("v_add_f32 v50, v50, v51")
    a("v_add_f32 v48, v48, v50")
    for k in range(4):
        a(f"v_cvt_pk_bf16_f32 v{52+k}, v{ACC+2*k}, v{ACC+2*k+1}")
    a("v_mov_b32 v49, v48")
    a("v_permlane32_swap_b32 v48, v49")
    a("v_add_f32 v48, v48, v49")
    a(f"s_lshl_b32 s56, s{S_WAVE}, 10")
    a(f"s_add_u32 s57, s56, {LDS_PB}")
    a("v_add_u32 v11, s57, v4")
    a(f"ds_write_b128 v11, {vr(52)}")
    a(f"ds_write_b32 v14, v48 offset:{LDS_LS-LDS_MX}")
    a("v_bfe_u32 v16, v1, 2, 2")
    a("v_lshrrev_b32 v17, 5, v1")
    a("v_lshl_add_u32 v18, v17, 2, v16")
    a("v_lshlrev_b32 v18, 10, v18")
    a("v_and_b32 v19, 1, v1")
    a("v_lshl_add_u32 v18, v19, 3, v18")
    a(f"s_lshr_b32 s56, s{S_WAVE}, 1")
    a("s_lshl_b32 s56, s56, 8")
    a("v_add_u32 v18, s56, v18")
    a("v_bfe_u32 v19, v1, 4, 1")
    a("v_bfe_u32 v20, v1, 1, 1")
    a("v_lshl_add_u32 v19, v19, 1, v20")
    a("v_xor_b32 v19, v19, v17")
    a(f"s_and_b32 s56, s{S_WAVE}, 1")
    a("s_lshl_b32 s56, s56, 1")
    a("v_xor_b32 v20, s56, v16")
    a("v_lshl_add_u32 v19, v20, 2, v19")
    a("v_lshl_add_u32 v18, v19, 4, v18")
    PA = 20
    a(f"v_mov_b32 v{PA}, v18")
    a(f"v_xor_b32 v{PA+1}, 32, v18")
    a(f"v_add_u32 v{PA+1}, 8192, v{PA+1}")
    a(f"v_xor_b32 v{PA+2}, 64, v{PA}")
    a(f"v_xor_b32 v{PA+3}, 64, v{PA+1}")
    for k in range(4):
        a(f"v_add_u32 v{PA+4+k}, 65536, v{PA+k}")
    a("s_waitcnt lgkmcnt(0)")
    a("s_barrier")
    PF = 64
    a(f"v_add_u32 v11, {LDS_PB}, v4")
    for sg_ in range(8):
        a(f"ds_read_b128 {vr(PF+4*sg_)}, v11 offset:{1024*sg_}")
    VF = 128
    for sg_ in range(8):
        for T in range(2):
            for u in range(2):
                reg = VF + (sg_ * 2 + T) * 4 + 2 * u
                adr = PA + (4 if sg_ >= 4 else 0) + T * 2 + u
                a(f"ds_read_b64_tr_b16 v[{reg}:{reg+1}], v{adr} offset:{16384*(sg_&3)}")
    O = 32
    first = True
    for sg_ in range(8):
        for T in range(2):
            done_needed = 8 + (sg_ * 2 + T + 1) * 2
            remaining = 40 - done_needed
            a(f"s_waitcnt lgkmcnt({min(remaining, 15)})")
            c = "0" if sg_ == 0 else vr(O + 16 * T, 16)
            a(f"v_mfma_f32_32x32x16_bf16 {vr(O+16*T,16)}, {vr(VF+(sg_*2+T)*4)}, {vr(PF+4*sg_)}, {c}")
    a(f"v_add_u32 v15, {LDS_LS}, v13")
    a(f"ds_read_b128 {vr(64)}, v15")
    a(f"ds_read_b128 {vr(68)}, v15 offset:16")
    a("s_waitcnt lgkmcnt(0)")
    a("s_barrier")
    a("v_add_f32 v64, v64, v65")
    a("v_add_f32 v66, v66, v67")
    a("v_add_f32 v68, v68, v69")
    a("v_add_f32 v70, v70, v71")
    a("v_add_f32 v64, v64, v66")
    a("v_add_f32 v68, v68, v70")
    a("v_add_f32 v64, v64, v68")
    a("v_rcp_f32 v65, v64")
    a("v_log_f32 v66, v64")
    a("v_add_f32 v29, v28, v66")
    for r in range(32):
        a(f"v_mul_f32 v{O+r}, v{O+r}, v65")
    a("v_mul_u32_u24 v16, 1040, v6")
    a("v_lshl_add_u32 v16, v17, 3, v16")
    a(f"s_lshl_b32 s56, s{S_WAVE}, 7")
    a("v_add_u32 v16, s56, v16")
    for T in range(2):
        for g in range(4):
            r0 = O + 16 * T + 4 * g
            a(f"v_cvt_pk_bf16_f32 v{r0}, v{r0}, v{r0+1}")
            a(f"v_cvt_pk_bf16_f32 v{r0+1}, v{r0+2}, v{r0+3}")
            a(f"ds_write_b64 v16, v[{r0}:{r0+1}] offset:{64*T+16*g}")
    a("s_waitcnt lgkmcnt(0)")
    a("s_barrier")
    a(f"s_mul_i32 s56, s{S_WAVE}, {4*1040}")
    a("v_add_u32 v16, s56, v4")
    for k in range(4):
        a(f"ds_read_b128 {vr(64+4*k)}, v16 offset:{1040*k}")
    srd(a, SRD_C, P_WS, 4194304, WS_OP)
    a("v_lshlrev_b32 v17, 15, v3")
    a("v_lshl_add_u32 v17, v2, 4, v17")
    a(f"s_lshl_b32 s56, s{S_WAVE}, 19")
    a(f"s_lshl_b32 s57, s{idx}, 8")
    a("s_add_u32 s56, s56, s57")
    for k in range(4):
        a(f"s_waitcnt lgkmcnt({3-k})")
        a(f"buffer_store_dwordx4 {vr(64+4*k)}, v17, {sr(SRD_C)}, s56 offen")
        if k < 3:
            a("s_add_u32 s56, s56, 131072")
    lab = f"Latt_done{a.uid()}"
    a(f"s_cmp_lg_u32 s{S_WAVE}, 0")
    a(f"s_cbranch_scc1 {lab}")
    srd(a, SRD_D, P_WS, 16384, WS_LSE)
    a("v_lshlrev_b32 v17, 2, v6")
    a(f"s_lshl_b32 s57, s{idx}, 7")
    a("v_cmp_gt_u32 vcc, 32, v1")
    a("s_and_saveexec_b64 s[60:61], vcc")
    a(f"buffer_store_dword v29, v17, {sr(SRD_D)}, s57 offen")
    a("s_mov_b64 exec, s[60:61]")
    a.label(lab)


def role_post(a, idx):
    S_H, S_QQ = 52, 53
    a(f"s_and_b32 s{S_H}, s{idx}, 7")
    a(f"s_lshr_b32 s54, s{idx}, 5")
    a(f"s_lshl_b32 s54, s54, 3")
    a(f"s_add_u32 s{S_H}, s{S_H}, s54")
    a(f"s_lshr_b32 s{S_QQ}, s{idx}, 3")
    a(f"s_and_b32 s{S_QQ}, s{S_QQ}, 3")
    lane_setup(a)
    a("v_lshlrev_b32 v4, 4, v1")
    a(f"s_lshr_b32 s54, s{S_WAVE}, 2")
    a(f"s_and_b32 s55, s{S_WAVE}, 3")
    a("v_lshlrev_b32 v5, 7, v1")
    a("s_lshl_b32 s56, s54, 13")
    a(f"s_lshl_b32 s57, s{S_H}, 2")
    a("s_add_u32 s56, s56, s57")
    a("v_lshlrev_b32 v6, 10, v3")
    a("v_lshl_add_u32 v6, v2, 4, v6")
    a(f"s_lshl_b32 s57, s{S_H}, 2")
    a(f"s_add_u32 s57, s57, s{S_QQ}")
    a("s_lshl_b32 s57, s57, 15")
    a("s_lshl_b32 s58, s54, 14")
    a("s_add_u32 s57, s57, s58")
    a("s_lshl_b32 s58, s55, 12")
    a("s_add_u32 s57, s57, s58")
    a("v_lshlrev_b32 v7, 15, v3")
    a("v_lshl_add_u32 v7, v2, 4, v7")
    a(f"s_lshl_b32 s58, s{S_QQ}, 20")
    a(f"s_lshl_b32 s59, s{S_WAVE}, 17")
    a("s_add_u32 s58, s58, s59")
    a(f"s_lshl_b32 s59, s{S_H}, 8")
    a("s_add_u32 s58, s58, s59")
    a("v_lshlrev_b32 v8, 14, v3")
    a("v_lshl_add_u32 v8, v2, 4, v8")
    a(f"s_lshl_b32 s59, s{S_H}, 17")
    a("s_lshl_b32 s60, s54, 16")
    a("s_add_u32 s59, s59, s60")
    a("s_lshl_b32 s60, s55, 8")
    a("s_add_u32 s59, s59, s60")
    a("s_waitcnt lgkmcnt(0)")
    srd(a, SRD_A, P_WS, 16384, WS_LSE)
    srd(a, SRD_B, P_WS, 4194304, WS_OP)
    srd(a, SRD_C, P_WUV, 4194304)
    srd(a, SRD_D, P_WO, 4194304)
    a(f"buffer_load_dword v9, v5, {sr(SRD_A)}, s56 offen")
    OPR, WUV, WO = 64, 80, 96
    for i in range(4):
        a(f"buffer_load_dwordx4 {vr(OPR+4*i)}, v6, {sr(SRD_B)}, s57 offen offset:{256*i}")
    for i in range(4):
        a(f"buffer_load_dwordx4 {vr(WUV+4*i)}, v7, {sr(SRD_C)}, s58 offen{NT(OPT['nt_w'])}")
        if i < 3:
            a("s_add_u32 s58, s58, 8192")
    for i in range(16):
        a(f"buffer_load_dwordx4 {vr(WO+4*i)}, v8, {sr(SRD_D)}, s59 offen offset:{1024*(i&3)}{NT(OPT.get('nt_wo', False))}")
        if (i & 3) == 3 and i < 15:
            a("s_add_u32 s59, s59, 4096")
    MASK = 24
    make_masks(a, MASK, 28, 29)
    a("s_waitcnt vmcnt(24)")
    a("v_mov_b32 v10, v9")
    allreduce(a, "v_max_f32", [10], [11])
    a("v_sub_f32 v9, v9, v10")
    a("v_exp_f32 v9, v9")
    a("v_mov_b32 v10, v9")
    allreduce(a, "v_add_f32", [10], [11])
    a("v_rcp_f32 v10, v10")
    a("v_mul_f32 v9, v9, v10")
    a("s_lshl_b32 s60, s55, 6")
    a("v_lshlrev_b32 v10, 4, v3")
    a("v_add_u32 v10, s60, v10")
    DUP = 32
    for i in range(4):
        a(f"v_add_u32 v11, {4*i}, v10")
        a(f"ds_bpermute_b32 v{DUP+i}, v11, v9")
    a("s_waitcnt lgkmcnt(0)")
    a("v_bfe_u32 v10, v1, 3, 1")
    a("v_cmp_eq_u32 vcc, s54, v10")
    for i in range(4):
        a(f"v_cndmask_b32 v{DUP+i}, 0, v{DUP+i}, vcc")
    for i in range(4):
        a(f"v_cvt_pk_bf16_f32 v{DUP+i}, v{DUP+i}, v{DUP+i}")
    AF = 160
    afrags(a, DUP, 4, MASK, AF)
    ACC = 52
    for i in range(4):
        a(f"s_waitcnt vmcnt({23-i})")
        c = "0" if i == 0 else vr(ACC)
        a(f"v_mfma_f32_16x16x32_bf16 {vr(ACC)}, {vr(AF+4*i)}, {vr(OPR+4*i)}, {c}")
    a(f"s_lshl_b32 s60, s{S_WAVE}, 10")
    a("v_add_u32 v12, s60, v4")
    a(f"ds_write_b128 v12, {vr(ACC)}")
    a("s_waitcnt lgkmcnt(0)")
    a("s_barrier")
    reduce8(a, 4, 0, ACC, 176)
    a(f"s_lshl_b32 s60, s{S_WAVE}, 10")
    a("s_add_u32 s60, s60, 16384")
    a("v_lshrrev_b32 v13, 5, v1")
    a("v_lshlrev_b32 v13, 9, v13")
    a("v_lshl_add_u32 v13, v2, 5, v13")
    a("v_and_b32 v14, 1, v3")
    a("v_lshl_add_u32 v13, v14, 4, v13")
    a("v_add_u32 v13, s60, v13")
    for r in range(4):
        a(f"v_cvt_pk_bf16_f32 v{ACC+r}, v{ACC+r}, v{ACC+r}")
    a(f"ds_write_b128 v13, {vr(ACC)}")
    a("v_bfe_u32 v14, v1, 3, 1")
    a("v_lshlrev_b32 v14, 9, v14")
    a("v_lshl_add_u32 v15, v3, 4, v14")
    a(f"s_lshl_b32 s61, s{S_WAVE}, 6")
    a("s_add_u32 s61, s61, s60")
    a("v_add_u32 v15, s61, v15")
    a("s_waitcnt lgkmcnt(0)")
    a(f"ds_read_b128 {vr(DUP)}, v15")
    a("s_waitcnt lgkmcnt(0)")
    afrags(a, DUP, 4, MASK, AF)
    for i in range(4):
        a(f"s_waitcnt vmcnt({19-i})")
        c = "0" if i == 0 else vr(ACC)
        a(f"v_mfma_f32_16x16x32_bf16 {vr(ACC)}, {vr(AF+4*i)}, {vr(WUV+4*i)}, {c}")
    a(f"ds_write_b128 v12, {vr(ACC)} offset:8192")
    a("s_waitcnt lgkmcnt(0)")
    a("s_barrier")
    reduce8(a, 4, 8192, ACC, 176)
    for r in range(4):
        a(f"v_cvt_pk_bf16_f32 v{ACC+r}, v{ACC+r}, v{ACC+r}")
    a(f"ds_write_b128 v13, {vr(ACC)}")
    a("v_lshl_add_u32 v15, v3, 6, v14")
    a("s_lshl_b32 s61, s54, 8")
    a("s_add_u32 s61, s61, s60")
    a("v_add_u32 v15, s61, v15")
    a("s_waitcnt lgkmcnt(0)")
    D16 = 176
    for k in range(4):
        a(f"ds_read_b128 {vr(D16+4*k)}, v15 offset:{16*k}")
    a("s_waitcnt lgkmcnt(0)")
    AF2 = 192
    afrags(a, D16, 16, MASK, AF2)
    for i in range(16):
        a(f"s_waitcnt vmcnt({15-i})")
        c = "0" if i == 0 else vr(ACC)
        a(f"v_mfma_f32_16x16x32_bf16 {vr(ACC)}, {vr(AF2+4*i)}, {vr(WO+4*i)}, {c}")
    a(f"ds_write_b128 v12, {vr(ACC)}")
    a("s_waitcnt lgkmcnt(0)")
    a("s_barrier")
    lab = f"Lpost_done{a.uid()}"
    a(f"s_cmp_ge_u32 s{S_WAVE}, 4")
    a(f"s_cbranch_scc1 {lab}")
    reduce8(a, 12, 0, ACC, 176, n=2, stride=4096)
    srd(a, SRD_E, P_WS, 128 * 4096, WS_SP)
    a("v_lshrrev_b32 v9, 5, v1")
    a("v_lshlrev_b32 v9, 11, v9")
    a("v_lshl_add_u32 v9, v2, 5, v9")
    a("v_and_b32 v10, 1, v3")
    a("v_lshl_add_u32 v9, v10, 4, v9")
    a(f"s_lshl_b32 s59, s{idx}, 12")
    a("s_lshl_b32 s57, s55, 9")
    a("s_add_u32 s59, s59, s57")
    a(f"buffer_store_dwordx4 {vr(ACC)}, v9, {sr(SRD_E)}, s59 offen")
    a.label(lab)


def role_final(a, idx):
    lane_setup(a)
    a("v_lshlrev_b32 v4, 4, v1")
    a("v_lshrrev_b32 v5, 3, v1")
    a("v_lshlrev_b32 v5, 12, v5")
    a("v_and_b32 v6, 7, v1")
    a("v_lshl_add_u32 v5, v6, 4, v5")
    a(f"s_lshl_b32 s52, s{idx}, 7")
    a(f"s_lshl_b32 s53, s{S_WAVE}, 16")
    a("s_add_u32 s53, s53, s52")
    a("s_add_u32 s54, s53, 32768")
    a("s_waitcnt lgkmcnt(0)")
    srd(a, SRD_A, P_WS, 128 * 4096, WS_SP)
    srd(a, SRD_B, P_WS, 112 * 4096, WS_YP)
    srd(a, SRD_C, P_X, 2048)
    a(f"buffer_load_dwordx4 v[8:11], v5, {sr(SRD_A)}, s53 offen")
    a(f"buffer_load_dwordx4 v[12:15], v5, {sr(SRD_A)}, s54 offen")
    a(f"buffer_load_dwordx4 v[16:19], v5, {sr(SRD_B)}, s53 offen")
    a(f"buffer_load_dwordx4 v[20:23], v5, {sr(SRD_B)}, s54 offen")
    a("v_lshlrev_b32 v7, 1, v1")
    a(f"s_lshl_b32 s55, s{idx}, 6")
    a(f"buffer_load_ushort v24, v7, {sr(SRD_C)}, s55 offen")
    a("s_waitcnt vmcnt(0)")
    for r in range(4):
        a(f"v_add_f32 v{8+r}, v{8+r}, v{12+r}")
        a(f"v_add_f32 v{16+r}, v{16+r}, v{20+r}")
    regs = [8, 9, 10, 11, 16, 17, 18, 19]
    tm = [32 + k for k in range(8)]
    for r in regs:
        a(f"v_add_f32_dpp v{r}, v{r}, v{r} row_ror:8 row_mask:0xf bank_mask:0xf")
    for sw in (16, 32):
        for r, t in zip(regs, tm):
            a(f"v_mov_b32 v{t}, v{r}")
        for r, t in zip(regs, tm):
            a(f"v_permlane{sw}_swap_b32 v{r}, v{t}")
        for r, t in zip(regs, tm):
            a(f"v_add_f32 v{r}, v{r}, v{t}")
    a(f"s_lshl_b32 s56, s{S_WAVE}, 8")
    a("v_lshl_add_u32 v25, v6, 4, s56")
    a("v_cmp_gt_u32 vcc, 8, v1")
    a("s_and_saveexec_b64 s[60:61], vcc")
    a("ds_write_b128 v25, v[8:11]")
    a("ds_write_b128 v25, v[16:19] offset:128")
    a("s_mov_b64 exec, s[60:61]")
    a("s_waitcnt lgkmcnt(0)")
    a("s_barrier")
    lab = f"Lfin_done{a.uid()}"
    a(f"s_cmp_lg_u32 s{S_WAVE}, 0")
    a(f"s_cbranch_scc1 {lab}")
    a("v_lshlrev_b32 v25, 2, v1")
    for k in range(8):
        a(f"ds_read_b32 v{8+k}, v25 offset:{256*k}")
    a("s_waitcnt lgkmcnt(0)")
    a("v_add_f32 v8, v8, v9")
    a("v_add_f32 v10, v10, v11")
    a("v_add_f32 v12, v12, v13")
    a("v_add_f32 v14, v14, v15")
    a("v_add_f32 v8, v8, v10")
    a("v_add_f32 v12, v12, v14")
    a("v_add_f32 v8, v8, v12")
    a("v_mov_b32 v9, v8")
    a("v_permlane32_swap_b32 v8, v9")
    a(f"v_mul_f32 v10, {f2u(-1.4426950408889634)}, v9")
    a("v_exp_f32 v10, v10")
    a("v_add_f32 v10, 1.0, v10")
    a("v_rcp_f32 v10, v10")
    a("v_mul_f32 v9, v9, v10")
    a("v_lshlrev_b32 v24, 16, v24")
    a("v_fma_f32 v8, v8, v9, v24")
    a("v_cvt_pk_bf16_f32 v8, v8, v8")
    srd(a, SRD_D, P_OUT, 2048)
    a("v_cmp_gt_u32 vcc, 32, v1")
    a("s_and_saveexec_b64 s[60:61], vcc")
    a(f"buffer_store_short v8, v7, {sr(SRD_D)}, s55 offen")
    a("s_mov_b64 exec, s[60:61]")
    a.label(lab)


def kernel(a, name, body, vgprs):
    a.raw(f".globl {name}")
    a.raw(".p2align 8")
    a.raw(f".type {name},@function")
    a.raw(f"{name}:")
    a.reset_hazards()
    body(a)
    a("s_endpgm")
    return (name, vgprs)


def descriptor(name, vgprs):
    acc = min(256, (vgprs + 3) // 4 * 4)
    return f""".amdhsa_kernel {name}
  .amdhsa_next_free_vgpr {vgprs}
  .amdhsa_next_free_sgpr 96
  .amdhsa_accum_offset {acc}
  .amdhsa_group_segment_fixed_size 0
  .amdhsa_kernarg_size 104
  .amdhsa_user_sgpr_count 2
  .amdhsa_user_sgpr_kernarg_segment_ptr 1
  .amdhsa_system_sgpr_workgroup_id_x 1
.end_amdhsa_kernel
"""


_uid = [0]


def _u(self=None):
    _uid[0] += 1
    return _uid[0]


Asm.uid = _u


def k1(a):
    load_ptrs(a)
    a("s_cmp_ge_u32 s2, 240")
    a("s_cbranch_scc1 Lk1_end")
    a("s_cmp_ge_u32 s2, 128")
    a("s_cbranch_scc1 Lk1_gu")
    a(f"s_mov_b32 s{S_IDX}, s2")
    role_q(a, S_IDX)
    a("s_branch Lk1_end")
    a.label("Lk1_gu")
    a(f"s_sub_u32 s{S_IDX}, s2, 128")
    role_gu(a, S_IDX)
    a.label("Lk1_end")


def k2(a):
    load_ptrs(a)
    a("s_cmp_ge_u32 s2, 240")
    a("s_cbranch_scc1 Lk2_end")
    a("s_cmp_ge_u32 s2, 128")
    a("s_cbranch_scc1 Lk2_dn")
    a(f"s_mov_b32 s{S_IDX}, s2")
    role_att(a, S_IDX)
    a("s_branch Lk2_end")
    a.label("Lk2_dn")
    a(f"s_sub_u32 s{S_IDX}, s2, 128")
    role_down(a, S_IDX)
    a.label("Lk2_end")


def k3(a):
    load_ptrs(a)
    a("s_cmp_ge_u32 s2, 128")
    a("s_cbranch_scc1 Lk3_end")
    a(f"s_mov_b32 s{S_IDX}, s2")
    role_post(a, S_IDX)
    a.label("Lk3_end")


def k4(a):
    load_ptrs(a)
    a("s_cmp_ge_u32 s2, 32")
    a("s_cbranch_scc1 Lk4_end")
    a(f"s_mov_b32 s{S_IDX}, s2")
    role_final(a, S_IDX)
    a.label("Lk4_end")


def main(out, nk=4, extra_empty=0):
    a = Asm()
    launches = [("k1_kernel", 240, 16384), ("k2_kernel", 240, 163840), ("k3_kernel", 128, 32768), ("k4_kernel", 32, 4096)][:nk]
    hdr = []
    for n, g, lds in launches:
        hdr.append(f"; @launch kernel={n} grid=({g},1,1) block=(512,1,1) lds={lds}")
    for e in range(extra_empty):
        hdr.append(f"; @launch kernel=ke_kernel grid=(32,1,1) block=(64,1,1) lds=0")
    a.raw("\n".join(hdr))
    a.raw('.amdgcn_target "amdgcn-amd-amdhsa--gfx950"')
    a.raw(".text")
    descs = []
    descs.append(kernel(a, "k1_kernel", k1, 224))
    descs.append(kernel(a, "k2_kernel", k2, 192))
    descs.append(kernel(a, "k3_kernel", k3, 256))
    descs.append(kernel(a, "k4_kernel", k4, 48))
    if extra_empty:
        descs.append(kernel(a, "ke_kernel", lambda a: None, 8))
    a.raw('.section .rodata,"a"')
    used = {n for n, _, _ in launches} | ({"ke_kernel"} if extra_empty else set())
    for n, v in descs:
        a.raw(".p2align 6")
        a.raw(descriptor(n, v))
    open(out, "w").write(a.text())
    print("wrote", out, "nops inserted:", a.nops_inserted)


if __name__ == "__main__":
    out = sys.argv[1] if len(sys.argv) > 1 else "m.s"
    nk = int(sys.argv[2]) if len(sys.argv) > 2 else 4
    ee = int(sys.argv[3]) if len(sys.argv) > 3 else 0
    main(out, nk, ee)
```

```python
import sys, struct
from asmlib import Asm

NAME = "recurrent_scan__compressed_kv_cla__glu_gated_reglu__decode"

WS_QA = 0x000000
WS_GU = 0x010000
WS_LSE = 0x030000
WS_EPOCH = 0x034000
WS_SP = 0x040000
WS_YP = 0x0C0000
WS_ST = 0x140000
WS_FLAG = 0x180000
F_Q = 0
F_G = F_Q + 128
F_O = F_G + 128
F_S = F_O + 1024
F_Y = F_S + 512
NFLAG = F_Y + 512
WS_OP = 0x200000

P_X, P_KV, P_WQ, P_WUK, P_WUV, P_WO, P_BX, P_WG = 4, 6, 8, 10, 12, 14, 16, 18
P_WU, P_WD, P_OUT, P_DBG, P_WS = 20, 22, 24, 26, 28
S_EPOCH = 3
S_WAVE = 30
S_IDX = 31
SRD_A, SRD_B, SRD_C, SRD_D, SRD_E = 32, 36, 40, 44, 48
SRD_F = 96
S_H, S_QQ = 52, 53
S_SPIN = 100

QSCALE = (128 ** -0.5) * 1.4426950408889634
SPIN_MAX = 40000

OPT = dict(nt_w=True, nt_kv=True, nt_wq=False, nt_wo=False, stamps=False, stamp_wave=0)


def f2u(x):
    return "0x%08x" % struct.unpack("<I", struct.pack("<f", x))[0]


def vr(n, k=4):
    return "v[%d:%d]" % (n, n + k - 1) if k > 1 else "v%d" % n


def sr(n, k=4):
    return "s[%d:%d]" % (n, n + k - 1)


_uid = [0]


def uid():
    _uid[0] += 1
    return _uid[0]


def srd(a, dst, ptr, size, off=0):
    if off:
        a(f"s_add_u32 s{dst}, s{ptr}, {off}")
        a(f"s_addc_u32 s{dst+1}, s{ptr+1}, 0")
    else:
        a(f"s_mov_b32 s{dst}, s{ptr}")
        a(f"s_mov_b32 s{dst+1}, s{ptr+1}")
    a(f"s_mov_b32 s{dst+2}, {size}")
    a(f"s_mov_b32 s{dst+3}, 0x20000")


def allreduce(a, op, regs, tmps):
    for dpp in ["quad_perm:[1,0,3,2]", "quad_perm:[2,3,0,1]", "row_half_mirror", "row_mirror"]:
        for r in regs:
            a(f"{op}_dpp v{r}, v{r}, v{r} {dpp} row_mask:0xf bank_mask:0xf")
    for sw in (16, 32):
        for r, t in zip(regs, tmps):
            a(f"v_mov_b32 v{t}, v{r}")
        for r, t in zip(regs, tmps):
            a(f"v_permlane{sw}_swap_b32 v{r}, v{t}")
        for r, t in zip(regs, tmps):
            a(f"{op} v{r}, v{r}, v{t}")


def make_masks(a, m0, t0, t1):
    a(f"v_and_b32 v{t0}, 1, v1")
    a(f"v_cmp_eq_u32 vcc, 1, v{t0}")
    a(f"v_mov_b32 v{t0}, 0xffff")
    a(f"v_mov_b32 v{t1}, 0xffff0000")
    a(f"v_cndmask_b32 v{t0}, v{t0}, v{t1}, vcc")
    a(f"v_bfe_u32 v{t1}, v1, 1, 2")
    for k in range(4):
        a(f"v_cmp_eq_u32 vcc, {k}, v{t1}")
        a(f"v_cndmask_b32 v{m0+k}, 0, v{t0}, vcc")


def ln_stats(a, x0, x1, u0, mean, rstd, t):
    for b, x in enumerate((x0, x1)):
        for k in range(4):
            a(f"v_lshlrev_b32 v{u0+8*b+2*k}, 16, v{x+k}")
            a(f"v_and_b32 v{u0+8*b+2*k+1}, 0xffff0000, v{x+k}")
    s0, s1, q0, q1, ta, tb = t, t + 1, t + 2, t + 3, t + 4, t + 5
    for k in range(1, 8):
        for b, s in enumerate((s0, s1)):
            u = u0 + 8 * b
            if k == 1:
                a(f"v_add_f32 v{s}, v{u}, v{u+1}")
            else:
                a(f"v_add_f32 v{s}, v{s}, v{u+k}")
    allreduce(a, "v_add_f32", [s0, s1], [ta, tb])
    a(f"v_mul_f32 v{s0}, {f2u(1.0/512)}, v{s0}")
    a(f"v_mul_f32 v{s1}, {f2u(1.0/512)}, v{s1}")
    for k in range(8):
        for b, s in enumerate((s0, s1)):
            u = u0 + 8 * b
            a(f"v_sub_f32 v{u+k}, v{u+k}, v{s}")
    for k in range(8):
        for b, q in enumerate((q0, q1)):
            u = u0 + 8 * b
            if k == 0:
                a(f"v_mul_f32 v{q}, v{u}, v{u}")
            else:
                a(f"v_fmac_f32 v{q}, v{u+k}, v{u+k}")
    allreduce(a, "v_add_f32", [q0, q1], [ta, tb])
    a(f"v_mov_b32 v{ta}, {f2u(1e-5)}")
    a(f"v_mov_b32 v{tb}, {f2u(1.0/512)}")
    a(f"v_fma_f32 v{q0}, v{q0}, v{tb}, v{ta}")
    a(f"v_fma_f32 v{q1}, v{q1}, v{tb}, v{ta}")
    a(f"v_rsq_f32 v{q0}, v{q0}")
    a(f"v_rsq_f32 v{q1}, v{q1}")
    a(f"v_and_b32 v{ta}, 8, v1")
    a(f"v_cmp_ne_u32 vcc, 0, v{ta}")
    a(f"v_cndmask_b32 v{mean}, v{s0}, v{s1}, vcc")
    a(f"v_cndmask_b32 v{rstd}, v{q0}, v{q1}, vcc")


def norm_dup(a, src, n, dst, mean, rstd, t):
    a(f"v_mul_f32 v{t}, v{mean}, v{rstd}")
    for k in range(n // 2):
        a(f"v_lshlrev_b32 v{dst+2*k}, 16, v{src+k}")
        a(f"v_and_b32 v{dst+2*k+1}, 0xffff0000, v{src+k}")
    for k in range(n):
        a(f"v_sub_f32 v{dst+k}, v{dst+k}, v{mean}")
    for k in range(n):
        a(f"v_mul_f32 v{dst+k}, v{dst+k}, v{rstd}")
    for k in range(n):
        a(f"v_cvt_pk_bf16_f32 v{dst+k}, v{dst+k}, v{dst+k}")


def afrags(a, dup, n, masks, dst):
    for i in range(n):
        for k in range(4):
            a(f"v_and_b32 v{dst+4*i+k}, v{dup+i}, v{masks+k}")


def reduce8(a, rd_addr, base_off, dst, tmp, n=8, stride=1024):
    for k in range(n):
        a(f"ds_read_b128 {vr(tmp+4*k)}, v{rd_addr} offset:{base_off + k*stride}")
    a("s_waitcnt lgkmcnt(0)")
    cur = [tmp + 4 * k for k in range(n)]
    while len(cur) > 2:
        nxt = []
        for p in range(0, len(cur), 2):
            for r in range(4):
                a(f"v_add_f32 v{cur[p]+r}, v{cur[p]+r}, v{cur[p+1]+r}")
            nxt.append(cur[p])
        cur = nxt
    for r in range(4):
        a(f"v_add_f32 v{dst+r}, v{cur[0]+r}, v{cur[1]+r}")


def NT(flag):
    return " nt" if flag else ""


NST = 16


def stamp(a, k):
    if not OPT["stamps"]:
        return
    a(f"s_memrealtime s[{64+2*k}:{65+2*k}]")


def stamp_init(a):
    if not OPT["stamps"]:
        return
    for k in range(NST):
        a(f"s_mov_b64 s[{64+2*k}:{65+2*k}], 0")


def stamp_flush(a):
    if not OPT["stamps"]:
        return
    lab = f"Lst{uid()}"
    a(f"s_cmp_lg_u32 s{S_WAVE}, {OPT['stamp_wave']}")
    a(f"s_cbranch_scc1 {lab}")
    a("s_waitcnt vmcnt(0) lgkmcnt(0)")
    a(f"s_memrealtime s[{64+2*(NST-1)}:{65+2*(NST-1)}]")
    a(f"s_lshl_b32 s54, s2, 7")
    a(f"s_add_u32 s54, s54, {WS_ST}")
    a(f"s_add_u32 s56, s{P_WS}, s54")
    a(f"s_addc_u32 s57, s{P_WS+1}, 0")
    a("s_mov_b64 exec, 1")
    a("v_mov_b32 v0, 0")
    a("s_waitcnt lgkmcnt(0)")
    for k in range(NST):
        a(f"v_mov_b32 v2, s{64+2*k}")
        a(f"v_mov_b32 v3, s{65+2*k}")
        a(f"global_store_dwordx2 v0, v[2:3], s[56:57] offset:{8*k}")
    a("s_mov_b64 exec, -1")
    a.label(lab)


def poll(a, voff, tmp, nloads=1, second_off=0):
    n = uid()
    a(f"s_mov_b32 s{S_SPIN}, {SPIN_MAX}")
    a.label(f"Lpoll{n}")
    a(f"buffer_load_dword v{tmp}, v{voff}, {sr(SRD_F)}, 0 offen sc1")
    if nloads == 2:
        a(f"s_mov_b32 s101, {second_off}")
        a(f"buffer_load_dword v{tmp+1}, v{voff}, {sr(SRD_F)}, s101 offen sc1")
    a("s_waitcnt vmcnt(0)")
    a(f"v_cmp_ne_u32 vcc, s{S_EPOCH}, v{tmp}")
    if nloads == 2:
        a(f"v_cmp_ne_u32 s[60:61], s{S_EPOCH}, v{tmp+1}")
        a("s_or_b64 vcc, vcc, s[60:61]")
    a("s_cmp_eq_u64 vcc, 0")
    a(f"s_cbranch_scc1 Lpolld{n}")
    a(f"s_sub_u32 s{S_SPIN}, s{S_SPIN}, 1")
    a(f"s_cmp_lg_u32 s{S_SPIN}, 0")
    a(f"s_cbranch_scc1 Lpoll{n}")
    a.label(f"Lpolld{n}")
    a("s_nop 0")


def set_flag(a, soff_sgpr, vtmp):
    a(f"v_mov_b32 v{vtmp}, s{S_EPOCH}")
    a(f"v_mov_b32 v{vtmp+1}, 0")
    a("s_mov_b64 s[60:61], exec")
    a("s_mov_b64 exec, 1")
    a(f"buffer_store_dword v{vtmp}, v{vtmp+1}, {sr(SRD_F)}, s{soff_sgpr} offen sc1")
    a("s_mov_b64 exec, s[60:61]")


def wgt_q(a):
    a("v_and_b32 v5, 8, v1")
    a("v_lshlrev_b32 v5, 7, v5")
    a("v_lshl_add_u32 v5, v3, 5, v5")
    a("v_lshlrev_b32 v6, 17, v3")
    a("v_lshl_add_u32 v6, v2, 4, v6")
    a("v_lshlrev_b32 v7, 13, v2")
    a("v_lshl_add_u32 v7, v3, 4, v7")
    a(f"s_lshl_b32 s55, s{S_WAVE}, 7")
    a(f"s_lshl_b32 s56, s{S_WAVE}, 19")
    a(f"s_lshl_b32 s57, s{S_H}, 8")
    a("s_add_u32 s56, s56, s57")
    a(f"s_lshl_b32 s58, s{S_QQ}, 20")
    a(f"s_lshl_b32 s59, s{S_WAVE}, 17")
    a("s_add_u32 s58, s58, s59")
    a("s_add_u32 s58, s58, s57")
    MASK = 24
    make_masks(a, MASK, 28, 29)
    a("s_waitcnt lgkmcnt(0)")
    a(f"s_load_dword s{S_EPOCH}, s[{P_WS}:{P_WS+1}], {WS_EPOCH}")
    srd(a, SRD_A, P_X, 2048)
    a(f"buffer_load_dwordx4 v[8:11], v4, {sr(SRD_A)}, 0 offen")
    a(f"buffer_load_dwordx4 v[12:15], v4, {sr(SRD_A)}, 0 offen offset:1024")
    a(f"buffer_load_dwordx4 v[16:19], v5, {sr(SRD_A)}, s55 offen")
    a(f"buffer_load_dwordx4 v[20:23], v5, {sr(SRD_A)}, s55 offen offset:16")
    srd(a, SRD_B, P_WQ, 4194304)
    srd(a, SRD_C, P_WUK, 4194304)
    srd(a, SRD_F, P_WS, NFLAG * 64, WS_FLAG)
    WQ, WUK, AF = 64, 128, 160

    def bulk():
        for i in range(16):
            a(f"buffer_load_dwordx4 {vr(WQ+4*i)}, v6, {sr(SRD_B)}, s56 offen{NT(OPT['nt_wq'])}")
            if i < 15:
                a("s_add_u32 s56, s56, 8192")
        for s in range(4):
            a(f"buffer_load_dwordx4 {vr(WUK+4*s)}, v7, {sr(SRD_C)}, s58 offen offset:{64*s}{NT(OPT['nt_w'])}")

    late = f"Lq_late{uid()}"
    lnl = f"Lq_ln{uid()}"
    a(f"s_cmp_ge_u32 s{S_WAVE}, 4")
    a(f"s_cbranch_scc1 {late}")
    bulk()
    a("s_waitcnt vmcnt(20)")
    a(f"s_branch {lnl}")
    a.label(late)
    a("s_waitcnt vmcnt(0)")
    a.label(lnl)
    stamp(a, 1)
    MEAN, RSTD = 30, 31
    ln_stats(a, 8, 12, 32, MEAN, RSTD, 48)
    DUP = 32
    norm_dup(a, 16, 16, DUP, MEAN, RSTD, 48)
    afrags(a, DUP, 16, MASK, AF)
    skip = f"Lq_early{uid()}"
    a(f"s_cmp_lt_u32 s{S_WAVE}, 4")
    a(f"s_cbranch_scc1 {skip}")
    bulk()
    a.label(skip)
    stamp(a, 2)
    ACC = 52
    for i in range(16):
        a(f"s_waitcnt vmcnt({19-i})")
        c = "0" if i == 0 else vr(ACC)
        a(f"v_mfma_f32_16x16x32_bf16 {vr(ACC)}, {vr(AF+4*i)}, {vr(WQ+4*i)}, {c}")
    stamp(a, 3)
    a(f"s_lshl_b32 s59, s{S_WAVE}, 10")
    a("v_add_u32 v8, s59, v4")
    a(f"ds_write_b128 v8, {vr(ACC)}")
    a(f"s_lshl_b32 s59, s{S_WAVE}, 9")
    a("s_add_u32 s59, s59, 8192")
    a("v_lshrrev_b32 v9, 5, v1")
    a("v_lshlrev_b32 v9, 8, v9")
    a("v_lshl_add_u32 v9, v2, 4, v9")
    a("v_and_b32 v10, 1, v3")
    a("v_lshl_add_u32 v9, v10, 3, v9")
    a("v_add_u32 v9, s59, v9")
    a("v_and_b32 v10, 1, v1")
    a("v_lshlrev_b32 v10, 8, v10")
    a("v_lshl_add_u32 v10, v3, 4, v10")
    a("v_add_u32 v10, s59, v10")
    a("s_waitcnt lgkmcnt(0)")
    a(f"s_add_u32 s{S_EPOCH}, s{S_EPOCH}, 1")
    a("s_barrier")
    stamp(a, 4)
    reduce8(a, 4, 0, ACC, 64)
    a(f"v_cvt_pk_bf16_f32 v{ACC}, v{ACC}, v{ACC+1}")
    a(f"v_cvt_pk_bf16_f32 v{ACC+1}, v{ACC+2}, v{ACC+3}")
    a(f"ds_write_b64 v9, v[{ACC}:{ACC+1}]")
    a("s_waitcnt lgkmcnt(0)")
    QF = 64
    for s in range(4):
        a(f"ds_read_b128 {vr(QF+4*s)}, v10 offset:{64*s}")
    a("s_waitcnt vmcnt(0) lgkmcnt(0)")
    ACC2 = 56
    for s in range(4):
        c = "0" if s == 0 else vr(ACC2)
        a(f"v_mfma_f32_16x16x32_bf16 {vr(ACC2)}, {vr(WUK+4*s)}, {vr(QF+4*s)}, {c}")
    a(f"s_mov_b32 s59, {f2u(QSCALE)}")
    a(f"s_lshl_b32 s58, s{S_WAVE}, 5")
    a("s_add_u32 s58, s58, 12288")
    a("v_lshlrev_b32 v9, 8, v2")
    a("v_lshl_add_u32 v9, v3, 3, v9")
    a("v_add_u32 v9, s58, v9")
    for r in range(4):
        a(f"v_mul_f32 v{ACC2+r}, s59, v{ACC2+r}")
    a(f"v_cvt_pk_bf16_f32 v{ACC2}, v{ACC2}, v{ACC2+1}")
    a(f"v_cvt_pk_bf16_f32 v{ACC2+1}, v{ACC2+2}, v{ACC2+3}")
    a("v_cmp_gt_u32 vcc, 2, v2")
    a("s_and_saveexec_b64 s[60:61], vcc")
    a(f"ds_write_b64 v9, v[{ACC2}:{ACC2+1}]")
    a("s_mov_b64 exec, s[60:61]")
    a("s_waitcnt lgkmcnt(0)")
    a("s_barrier")
    lab = f"Lq_done{uid()}"
    a(f"s_cmp_lg_u32 s{S_WAVE}, 0")
    a(f"s_cbranch_scc1 {lab}")
    srd(a, SRD_D, P_WS, 65536, WS_QA)
    a(f"ds_read_b128 v[8:11], v4 offset:12288")
    a("v_lshlrev_b32 v12, 15, v3")
    a("v_lshl_add_u32 v12, v2, 4, v12")
    a(f"s_lshl_b32 s59, s{S_H}, 10")
    a(f"s_lshl_b32 s57, s{S_QQ}, 8")
    a("s_add_u32 s59, s59, s57")
    a("v_cmp_gt_u32 vcc, 32, v1")
    a("s_and_saveexec_b64 s[60:61], vcc")
    a("s_waitcnt lgkmcnt(0)")
    a(f"buffer_store_dwordx4 v[8:11], v12, {sr(SRD_D)}, s59 offen sc1")
    a("s_mov_b64 exec, s[60:61]")
    a(f"s_lshl_b32 s59, s{S_IDX}, 6")
    a(f"s_add_u32 s59, s59, {F_Q*64}")
    a("s_waitcnt vmcnt(0)")
    set_flag(a, 59, 8)
    a.label(lab)
    stamp(a, 5)


def wgt_gu(a):
    S_MAT, S_T, S_RQ = 54, 55, 56
    done = f"Lgu_done{uid()}"
    a(f"s_cmp_ge_u32 s{S_IDX}, 112")
    a(f"s_cbranch_scc1 {done}")
    a(f"s_cmp_ge_u32 s{S_IDX}, 56")
    a(f"s_cselect_b32 s{S_MAT}, 1, 0")
    a(f"s_mul_i32 s57, s{S_MAT}, 56")
    a(f"s_sub_u32 s57, s{S_IDX}, s57")
    a(f"s_lshr_b32 s{S_T}, s57, 2")
    a(f"s_and_b32 s{S_RQ}, s57, 3")
    a("v_and_b32 v5, 8, v1")
    a("v_lshlrev_b32 v5, 7, v5")
    a("v_lshl_add_u32 v5, v3, 3, v5")
    a("v_mul_u32_u24 v6, 14336, v3")
    a("v_lshl_add_u32 v6, v2, 4, v6")
    a(f"s_lshl_b32 s57, s{S_RQ}, 7")
    a(f"s_lshl_b32 s58, s{S_WAVE}, 4")
    a("s_add_u32 s57, s57, s58")
    a("s_mul_i32 s58, s57, 3584")
    a(f"s_lshl_b32 s59, s{S_T}, 8")
    a("s_add_u32 s58, s58, s59")
    a("s_lshl_b32 s57, s57, 1")
    a(f"s_cmp_eq_u32 s{S_MAT}, 0")
    a(f"s_cselect_b32 s{SRD_B}, s{P_WG}, s{P_WU}")
    a(f"s_cselect_b32 s{SRD_B+1}, s{P_WG+1}, s{P_WU+1}")
    a(f"s_mov_b32 s{SRD_B+2}, {512*3584}")
    a(f"s_mov_b32 s{SRD_B+3}, 0x20000")
    a(f"buffer_load_dwordx2 v[16:17], v5, {sr(SRD_A)}, s57 offen")
    W, AF = 64, 96
    for i in range(4):
        a(f"buffer_load_dwordx4 {vr(W+4*i)}, v6, {sr(SRD_B)}, s58 offen{NT(OPT['nt_w'])}")
        if i < 3:
            a("s_add_u32 s58, s58, 3584")
    a("s_waitcnt vmcnt(4)")
    DUP = 32
    norm_dup(a, 16, 4, DUP, 30, 31, 48)
    afrags(a, DUP, 4, 24, AF)
    ACC = 52
    for i in range(4):
        a(f"s_waitcnt vmcnt({3-i})")
        c = "0" if i == 0 else vr(ACC)
        a(f"v_mfma_f32_16x16x32_bf16 {vr(ACC)}, {vr(AF+4*i)}, {vr(W+4*i)}, {c}")
    a(f"s_lshl_b32 s59, s{S_WAVE}, 10")
    a("v_add_u32 v8, s59, v4")
    a(f"ds_write_b128 v8, {vr(ACC)} offset:16384")
    a("s_waitcnt lgkmcnt(0)")
    a("s_barrier")
    a(f"s_cmp_lg_u32 s{S_WAVE}, 0")
    a(f"s_cbranch_scc1 {done}")
    reduce8(a, 4, 16384, ACC, 64)
    srd(a, SRD_D, P_WS, 4 * 2 * 2 * 7168, WS_GU)
    a("v_lshrrev_b32 v9, 5, v1")
    a("v_mul_u32_u24 v9, 14336, v9")
    a("v_lshl_add_u32 v9, v2, 5, v9")
    a("v_and_b32 v10, 1, v3")
    a("v_lshl_add_u32 v9, v10, 4, v9")
    a(f"s_mul_i32 s59, s{S_RQ}, {4*7168}")
    a(f"s_mul_i32 s57, s{S_MAT}, 7168")
    a("s_add_u32 s59, s59, s57")
    a(f"s_lshl_b32 s57, s{S_T}, 9")
    a("s_add_u32 s59, s59, s57")
    a(f"buffer_store_dwordx4 {vr(ACC)}, v9, {sr(SRD_D)}, s59 offen sc1")
    a(f"s_lshl_b32 s59, s{S_IDX}, 6")
    a(f"s_add_u32 s59, s59, {F_G*64}")
    a("s_waitcnt vmcnt(0)")
    set_flag(a, 59, 8)
    a.label(done)
    stamp(a, 6)


WD_R, WUV_R, WO_R = 224, 232, 128


def wgt_issue_rest(a):
    a(f"s_and_b32 s62, s{S_WAVE}, 3")
    a(f"s_lshr_b32 s63, s{S_WAVE}, 2")
    a("v_lshlrev_b32 v6, 11, v3")
    a("v_lshl_add_u32 v6, v2, 4, v6")
    a(f"s_lshl_b32 s54, s{S_IDX}, 4")
    a("s_lshl_b32 s55, s63, 3")
    a("s_add_u32 s54, s54, s55")
    a("s_lshl_b32 s56, s54, 10")
    a("s_lshl_b32 s57, s62, 8")
    a("s_add_u32 s56, s56, s57")
    srd(a, SRD_B, P_WD, 1792 * 1024)
    for i in range(2):
        a(f"buffer_load_dwordx4 {vr(WD_R+4*i)}, v6, {sr(SRD_B)}, s56 offen offset:{1024*i}{NT(OPT['nt_w'])}")
    a("v_lshlrev_b32 v7, 15, v3")
    a("v_lshl_add_u32 v7, v2, 4, v7")
    a(f"s_lshl_b32 s58, s{S_QQ}, 20")
    a(f"s_lshl_b32 s59, s{S_WAVE}, 17")
    a("s_add_u32 s58, s58, s59")
    a(f"s_lshl_b32 s59, s{S_H}, 8")
    a("s_add_u32 s58, s58, s59")
    srd(a, SRD_C, P_WUV, 4194304)
    for i in range(4):
        a(f"buffer_load_dwordx4 {vr(WUV_R+4*i)}, v7, {sr(SRD_C)}, s58 offen{NT(OPT['nt_w'])}")
        if i < 3:
            a("s_add_u32 s58, s58, 8192")
    a("v_lshlrev_b32 v8, 14, v3")
    a("v_lshl_add_u32 v8, v2, 4, v8")
    a(f"s_lshl_b32 s59, s{S_H}, 17")
    a("s_lshl_b32 s60, s63, 16")
    a("s_add_u32 s59, s59, s60")
    a("s_lshl_b32 s60, s62, 8")
    a("s_add_u32 s59, s59, s60")
    srd(a, SRD_D, P_WO, 4194304)
    for i in range(16):
        a(f"buffer_load_dwordx4 {vr(WO_R+4*i)}, v8, {sr(SRD_D)}, s59 offen offset:{1024*(i&3)}{NT(OPT['nt_wo'])}")
        if (i & 3) == 3 and i < 15:
            a("s_add_u32 s59, s59, 4096")
    stamp(a, 7)


def wgt_down(a):
    done = f"Ldn_done{uid()}"
    a(f"s_cmp_ge_u32 s{S_IDX}, 112")
    a(f"s_cbranch_scc1 {done}")
    a(f"s_lshr_b32 s54, s{S_IDX}, 3")
    a("s_lshl_b32 s54, s54, 2")
    a(f"s_add_u32 s54, s54, {F_G}")
    a("v_and_b32 v5, 3, v1")
    a("v_bfe_u32 v6, v1, 2, 1")
    a("v_mul_u32_u24 v6, 56, v6")
    a("v_add3_u32 v5, v5, v6, s54")
    a("v_lshlrev_b32 v5, 6, v5")
    poll(a, 5, 6)
    stamp(a, 8)
    a("v_bfe_u32 v5, v1, 3, 1")
    a("v_mul_u32_u24 v5, 14336, v5")
    a("v_lshl_add_u32 v5, v3, 3, v5")
    a(f"s_lshl_b32 s54, s{S_IDX}, 4")
    a("s_lshl_b32 s55, s63, 3")
    a("s_add_u32 s54, s54, s55")
    a("s_lshl_b32 s55, s54, 2")
    srd(a, SRD_A, P_WS, 4 * 2 * 2 * 7168, WS_GU)
    G = 32
    for rq in range(4):
        for mat in range(2):
            a(f"buffer_load_dwordx2 v[{G+4*rq+2*mat}:{G+4*rq+2*mat+1}], v5, {sr(SRD_A)}, s55 offen sc1")
            if not (rq == 3 and mat == 1):
                a("s_add_u32 s55, s55, %d" % (7168 if mat == 0 else 28672 - 7168))
    a("s_waitcnt vmcnt(0)")
    for k in range(4):
        a(f"v_add_f32 v{G+k}, v{G+k}, v{G+4+k}")
        a(f"v_add_f32 v{G+8+k}, v{G+8+k}, v{G+12+k}")
    for k in range(4):
        a(f"v_add_f32 v{G+k}, v{G+k}, v{G+8+k}")
    for i in range(2):
        a(f"v_max_f32 v{G+i}, 0, v{G+i}")
        a(f"v_mul_f32 v{G+i}, v{G+i}, v{G+2+i}")
        a(f"v_cvt_pk_bf16_f32 v{G+i}, v{G+i}, v{G+i}")
    AF = 96
    afrags(a, G, 2, 24, AF)
    ACC = 52
    for i in range(2):
        c = "0" if i == 0 else vr(ACC)
        a(f"v_mfma_f32_16x16x32_bf16 {vr(ACC)}, {vr(AF+4*i)}, {vr(WD_R+4*i)}, {c}")
    a(f"s_lshl_b32 s59, s{S_WAVE}, 10")
    a("v_add_u32 v8, s59, v4")
    a(f"ds_write_b128 v8, {vr(ACC)} offset:24576")
    a("s_waitcnt lgkmcnt(0)")
    a("s_barrier")
    a(f"s_cmp_ge_u32 s{S_WAVE}, 4")
    a(f"s_cbranch_scc1 {done}")
    reduce8(a, 8, 24576, ACC, 64, n=2, stride=4096)
    srd(a, SRD_E, P_WS, 112 * 4096, WS_YP)
    a("v_lshrrev_b32 v9, 5, v1")
    a("v_lshlrev_b32 v9, 11, v9")
    a("v_lshl_add_u32 v9, v2, 5, v9")
    a("v_and_b32 v10, 1, v3")
    a("v_lshl_add_u32 v9, v10, 4, v9")
    a(f"s_lshl_b32 s59, s{S_IDX}, 12")
    a("s_lshl_b32 s57, s62, 9")
    a("s_add_u32 s59, s59, s57")
    a(f"buffer_store_dwordx4 {vr(ACC)}, v9, {sr(SRD_E)}, s59 offen sc1")
    a(f"s_lshl_b32 s59, s{S_IDX}, 2")
    a("s_add_u32 s59, s59, s62")
    a(f"s_add_u32 s59, s59, {F_Y}")
    a("s_lshl_b32 s59, s59, 6")
    a("s_waitcnt vmcnt(0)")
    set_flag(a, 59, 8)
    a.label(done)
    stamp(a, 9)


def wgt_post(a):
    a("s_lshl_b32 s54, s63, 6")
    a("v_add_u32 v5, s54, v1")
    a("v_lshlrev_b32 v5, 3, v5")
    a(f"s_lshr_b32 s54, s{S_H}, 2")
    a(f"s_add_u32 s54, s54, {F_O}")
    a("v_add_u32 v5, s54, v5")
    a("v_lshlrev_b32 v5, 6, v5")
    a("v_lshlrev_b32 v7, 7, v1")
    a("s_lshl_b32 s56, s63, 13")
    a(f"s_lshl_b32 s57, s{S_H}, 2")
    a("s_add_u32 s56, s56, s57")
    a("v_lshlrev_b32 v8, 10, v3")
    a("v_lshl_add_u32 v8, v2, 4, v8")
    a(f"s_lshl_b32 s57, s{S_H}, 2")
    a(f"s_add_u32 s57, s57, s{S_QQ}")
    a("s_lshl_b32 s57, s57, 15")
    a("s_lshl_b32 s58, s63, 14")
    a("s_add_u32 s57, s57, s58")
    a("s_lshl_b32 s58, s62, 12")
    a("s_add_u32 s57, s57, s58")
    srd(a, SRD_A, P_WS, 16384, WS_LSE)
    srd(a, SRD_B, P_WS, 4194304, WS_OP)
    poll(a, 5, 6)
    stamp(a, 10)
    a(f"buffer_load_dword v9, v7, {sr(SRD_A)}, s56 offen sc1")
    OPR = 64
    for i in range(4):
        a(f"buffer_load_dwordx4 {vr(OPR+4*i)}, v8, {sr(SRD_B)}, s57 offen offset:{256*i} sc1")
    a("s_lshl_b32 s60, s62, 6")
    a("v_lshlrev_b32 v12, 4, v3")
    a("v_add_u32 v12, s60, v12")
    a("s_waitcnt vmcnt(4)")
    a("v_mov_b32 v10, v9")
    allreduce(a, "v_max_f32", [10], [11])
    a("v_sub_f32 v9, v9, v10")
    a("v_exp_f32 v9, v9")
    a("v_mov_b32 v10, v9")
    allreduce(a, "v_add_f32", [10], [11])
    a("v_rcp_f32 v10, v10")
    a("v_mul_f32 v9, v9, v10")
    DUP = 32
    for i in range(4):
        a(f"v_add_u32 v11, {4*i}, v12")
        a(f"ds_bpermute_b32 v{DUP+i}, v11, v9")
    a("v_bfe_u32 v10, v1, 3, 1")
    a("v_cmp_eq_u32 vcc, s63, v10")
    a("s_waitcnt lgkmcnt(0)")
    for i in range(4):
        a(f"v_cndmask_b32 v{DUP+i}, 0, v{DUP+i}, vcc")
    for i in range(4):
        a(f"v_cvt_pk_bf16_f32 v{DUP+i}, v{DUP+i}, v{DUP+i}")
    MASK = 24
    AF = 80
    afrags(a, DUP, 4, MASK, AF)
    ACC = 52
    for i in range(4):
        a(f"s_waitcnt vmcnt({3-i})")
        c = "0" if i == 0 else vr(ACC)
        a(f"v_mfma_f32_16x16x32_bf16 {vr(ACC)}, {vr(AF+4*i)}, {vr(OPR+4*i)}, {c}")
    R1, R2, R3, PRIV = 32768, 40960, 49152, 57344
    a(f"s_lshl_b32 s60, s{S_WAVE}, 10")
    a("v_add_u32 v12, s60, v4")
    a(f"ds_write_b128 v12, {vr(ACC)} offset:{R1}")
    a(f"s_add_u32 s60, s60, {PRIV}")
    a("v_lshrrev_b32 v13, 5, v1")
    a("v_lshlrev_b32 v13, 9, v13")
    a("v_lshl_add_u32 v13, v2, 5, v13")
    a("v_and_b32 v14, 1, v3")
    a("v_lshl_add_u32 v13, v14, 4, v13")
    a("v_add_u32 v13, s60, v13")
    a("v_bfe_u32 v14, v1, 3, 1")
    a("v_lshlrev_b32 v14, 9, v14")
    a("v_lshl_add_u32 v15, v3, 4, v14")
    a(f"s_lshl_b32 s61, s{S_WAVE}, 6")
    a("s_add_u32 s61, s61, s60")
    a("v_add_u32 v15, s61, v15")
    a("v_lshl_add_u32 v16, v3, 6, v14")
    a("s_lshl_b32 s61, s63, 8")
    a("s_add_u32 s61, s61, s60")
    a("v_add_u32 v16, s61, v16")
    a("s_waitcnt lgkmcnt(0)")
    a("s_barrier")
    stamp(a, 11)
    reduce8(a, 4, R1, ACC, 96)
    for r in range(4):
        a(f"v_cvt_pk_bf16_f32 v{ACC+r}, v{ACC+r}, v{ACC+r}")
    a(f"ds_write_b128 v13, {vr(ACC)}")
    a("s_waitcnt lgkmcnt(0)")
    a(f"ds_read_b128 {vr(DUP)}, v15")
    a("s_waitcnt lgkmcnt(0)")
    afrags(a, DUP, 4, MASK, AF)
    for i in range(4):
        c = "0" if i == 0 else vr(ACC)
        a(f"v_mfma_f32_16x16x32_bf16 {vr(ACC)}, {vr(AF+4*i)}, {vr(WUV_R+4*i)}, {c}")
    a(f"ds_write_b128 v12, {vr(ACC)} offset:{R2}")
    a("s_waitcnt lgkmcnt(0)")
    a("s_barrier")
    reduce8(a, 4, R2, ACC, 96)
    for r in range(4):
        a(f"v_cvt_pk_bf16_f32 v{ACC+r}, v{ACC+r}, v{ACC+r}")
    a(f"ds_write_b128 v13, {vr(ACC)}")
    a("s_waitcnt lgkmcnt(0)")
    D16 = 192
    for k in range(4):
        a(f"ds_read_b128 {vr(D16+4*k)}, v16 offset:{16*k}")
    a("s_waitcnt lgkmcnt(0)")
    AF2 = 64
    afrags(a, D16, 16, MASK, AF2)
    for i in range(16):
        c = "0" if i == 0 else vr(ACC)
        a(f"v_mfma_f32_16x16x32_bf16 {vr(ACC)}, {vr(AF2+4*i)}, {vr(WO_R+4*i)}, {c}")
    a(f"ds_write_b128 v12, {vr(ACC)} offset:{R3}")
    a("s_waitcnt lgkmcnt(0)")
    a("s_barrier")
    lab = f"Lpost_done{uid()}"
    a(f"s_cmp_ge_u32 s{S_WAVE}, 4")
    a(f"s_cbranch_scc1 {lab}")
    reduce8(a, 12, R3, ACC, 96, n=2, stride=4096)
    srd(a, SRD_E, P_WS, 128 * 4096, WS_SP)
    a("v_lshrrev_b32 v9, 5, v1")
    a("v_lshlrev_b32 v9, 11, v9")
    a("v_lshl_add_u32 v9, v2, 5, v9")
    a("v_and_b32 v10, 1, v3")
    a("v_lshl_add_u32 v9, v10, 4, v9")
    a(f"s_lshl_b32 s59, s{S_IDX}, 12")
    a("s_lshl_b32 s57, s62, 9")
    a("s_add_u32 s59, s59, s57")
    a(f"buffer_store_dwordx4 {vr(ACC)}, v9, {sr(SRD_E)}, s59 offen sc1")
    a(f"s_lshl_b32 s59, s{S_IDX}, 2")
    a("s_add_u32 s59, s59, s62")
    a(f"s_add_u32 s59, s59, {F_S}")
    a("s_lshl_b32 s59, s59, 6")
    stamp(a, 12)
    a("s_waitcnt vmcnt(0)")
    set_flag(a, 59, 8)
    a.label(lab)
    stamp(a, 13)


LDS_KV = 0
LDS_SC = 131072
LDS_SX = LDS_SC
LDS_PB = LDS_SC + 16384
LDS_MX = LDS_SC + 24576
LDS_LS = LDS_SC + 25600


def att(a):
    S_B, S_SP = 52, 53
    idx = S_IDX
    a(f"s_lshr_b32 s{S_B}, s{idx}, 6")
    a(f"s_lshl_b32 s54, s{idx}, 17")
    a("s_waitcnt lgkmcnt(0)")
    a(f"s_load_dword s{S_EPOCH}, s[{P_WS}:{P_WS+1}], {WS_EPOCH}")
    a(f"s_add_u32 s{SRD_A}, s{P_KV}, s54")
    a(f"s_addc_u32 s{SRD_A+1}, s{P_KV+1}, 0")
    a(f"s_mov_b32 s{SRD_A+2}, 131072")
    a(f"s_mov_b32 s{SRD_A+3}, 0x20000")
    srd(a, SRD_F, P_WS, NFLAG * 64, WS_FLAG)
    l_q = f"Latt_q{uid()}"
    l_loop = f"Latt_kv{uid()}"
    l_join = f"Latt_join{uid()}"
    a(f"s_cmp_eq_u32 s{S_WAVE}, 7")
    a(f"s_cbranch_scc1 {l_q}")
    a(f"s_mov_b32 s54, s{S_WAVE}")
    a.label(l_loop)
    a("s_and_b32 s55, s54, 3")
    a("s_lshl_b32 s55, s55, 6")
    a("s_bfe_u32 s56, s54, 0x20002")
    a("s_lshl_b32 s56, s56, 4")
    a("s_or_b32 s55, s55, s56")
    a("s_lshl_b32 s56, s54, 10")
    a("s_or_b32 s55, s55, s56")
    a("s_mov_b32 m0, s56")
    a("v_xor_b32 v5, s55, v4")
    a(f"buffer_load_dwordx4 v5, {sr(SRD_A)}, 0 offen{NT(OPT['nt_kv'])} lds")
    a("s_add_u32 s54, s54, 7")
    a("s_cmp_lt_u32 s54, 128")
    a(f"s_cbranch_scc1 {l_loop}")
    a(f"s_branch {l_join}")
    a.label(l_q)
    a(f"s_lshl_b32 s54, s{S_B}, 15")
    a(f"s_add_u32 s{SRD_B}, s{P_WS}, s54")
    a(f"s_addc_u32 s{SRD_B+1}, s{P_WS+1}, 0")
    a(f"s_mov_b32 s{SRD_B+2}, 32768")
    a(f"s_mov_b32 s{SRD_B+3}, 0x20000")
    a("v_lshlrev_b32 v5, 6, v1")
    a("s_waitcnt lgkmcnt(0)")
    a(f"s_add_u32 s{S_EPOCH}, s{S_EPOCH}, 1")
    poll(a, 5, 6, nloads=2, second_off=64 * 64)
    a(f"s_sub_u32 s{S_EPOCH}, s{S_EPOCH}, 1")
    stamp(a, 1)
    for hd in range(32):
        f = ((hd & 3) << 2) | ((hd >> 2) & 3)
        a(f"s_mov_b32 m0, {LDS_SC + hd*1024}")
        a(f"v_xor_b32 v5, {(f << 4) | (hd << 10)}, v4")
        a(f"buffer_load_dwordx4 v5, {sr(SRD_B)}, 0 offen sc1 lds")
    a.label(l_join)
    a("s_waitcnt lgkmcnt(0)")
    a(f"s_add_u32 s{S_EPOCH}, s{S_EPOCH}, 1")
    a(f"s_lshr_b32 s54, s{S_WAVE}, 1")
    a(f"s_and_b32 s55, s{S_WAVE}, 1")
    a("v_and_b32 v6, 31, v1")
    a("v_lshrrev_b32 v7, 5, v1")
    a("v_and_b32 v8, 3, v1")
    a("v_lshlrev_b32 v8, 2, v8")
    a("v_bfe_u32 v9, v1, 2, 2")
    a("v_or_b32 v8, v8, v9")
    a("v_xor_b32 v8, v8, v7")
    a("v_lshlrev_b32 v8, 4, v8")
    a("v_lshl_add_u32 v9, v6, 10, v8")
    a("s_lshl_b32 s56, s55, 9")
    a(f"s_add_u32 s57, s56, {LDS_SC}")
    a("v_add_u32 v9, s57, v9")
    a("s_lshl_b32 s57, s55, 4")
    a("v_xor_b32 v10, s57, v6")
    a("v_lshl_add_u32 v10, v10, 10, v8")
    a("s_lshl_b32 s57, s54, 15")
    a("s_add_u32 s57, s57, s56")
    a("v_add_u32 v10, s57, v10")
    AQ, AK = 16, 24
    for s in range(8):
        a(f"v_xor_b32 v{AQ+s}, {32*s}, v9")
        a(f"v_xor_b32 v{AK+s}, {32*s}, v10")
    stamp(a, 2)
    a("s_waitcnt vmcnt(0)")
    stamp(a, 3)
    a("s_barrier")
    stamp(a, 4)
    QF = 64
    for s in range(16):
        a(f"ds_read_b128 {vr(QF+4*s)}, v{AQ+(s&7)} offset:{256*(s>>3)}")
    a("s_waitcnt lgkmcnt(0)")
    a("s_barrier")
    KF = 128
    ACC = 32
    for s in range(16):
        a(f"ds_read_b128 {vr(KF+4*s)}, v{AK+(s&7)} offset:{256*(s>>3)}")
    for s in range(16):
        a(f"s_waitcnt lgkmcnt({15-s})")
        c = "0" if s == 0 else vr(ACC, 16)
        a(f"v_mfma_f32_32x32x16_bf16 {vr(ACC,16)}, {vr(KF+4*s)}, {vr(QF+4*s)}, {c}")
    stamp(a, 5)
    a(f"s_lshl_b32 s56, s{S_WAVE}, 11")
    a(f"s_add_u32 s57, s56, {LDS_SX}")
    a("v_add_u32 v11, s57, v4")
    a("s_xor_b32 s57, s57, 2048")
    a("v_add_u32 v12, s57, v4")
    a(f"ds_write_b128 v11, {vr(ACC+8)}")
    a(f"ds_write_b128 v11, {vr(ACC+12)} offset:1024")
    a("s_waitcnt lgkmcnt(0)")
    a("s_barrier")
    a(f"ds_read_b128 {vr(48)}, v12")
    a(f"ds_read_b128 {vr(52)}, v12 offset:1024")
    a("s_waitcnt lgkmcnt(0)")
    for r in range(8):
        a(f"v_add_f32 v{ACC+r}, v{ACC+r}, v{48+r}")
    a(f"v_max3_f32 v48, v{ACC}, v{ACC+1}, v{ACC+2}")
    a(f"v_max3_f32 v49, v{ACC+3}, v{ACC+4}, v{ACC+5}")
    a(f"v_max3_f32 v48, v48, v{ACC+6}, v{ACC+7}")
    a("v_max_f32 v48, v48, v49")
    a("v_mov_b32 v49, v48")
    a("v_permlane32_swap_b32 v48, v49")
    a("v_max_f32 v48, v48, v49")
    a(f"s_lshl_b32 s56, s{S_WAVE}, 2")
    a(f"s_add_u32 s57, s56, {LDS_MX}")
    a("v_lshlrev_b32 v13, 5, v6")
    a("v_add_u32 v14, s57, v13")
    a("ds_write_b32 v14, v48")
    a(f"v_add_u32 v15, {LDS_MX}, v13")
    a("s_waitcnt lgkmcnt(0)")
    a("s_barrier")
    a(f"ds_read_b128 {vr(48)}, v15")
    a(f"ds_read_b128 {vr(52)}, v15 offset:16")
    a("s_waitcnt lgkmcnt(0)")
    a("v_max3_f32 v48, v48, v49, v50")
    a("v_max3_f32 v52, v52, v53, v54")
    a("v_max3_f32 v48, v48, v51, v55")
    a("v_max_f32 v28, v48, v52")
    for r in range(8):
        a(f"v_sub_f32 v{ACC+r}, v{ACC+r}, v28")
    for r in range(8):
        a(f"v_exp_f32 v{ACC+r}, v{ACC+r}")
    a(f"v_add_f32 v48, v{ACC}, v{ACC+1}")
    a(f"v_add_f32 v49, v{ACC+2}, v{ACC+3}")
    a(f"v_add_f32 v50, v{ACC+4}, v{ACC+5}")
    a(f"v_add_f32 v51, v{ACC+6}, v{ACC+7}")
    a("v_add_f32 v48, v48, v49")
    a("v_add_f32 v50, v50, v51")
    a("v_add_f32 v48, v48, v50")
    for k in range(4):
        a(f"v_cvt_pk_bf16_f32 v{52+k}, v{ACC+2*k}, v{ACC+2*k+1}")
    a("v_mov_b32 v49, v48")
    a("v_permlane32_swap_b32 v48, v49")
    a("v_add_f32 v48, v48, v49")
    a(f"s_lshl_b32 s56, s{S_WAVE}, 10")
    a(f"s_add_u32 s57, s56, {LDS_PB}")
    a("v_add_u32 v11, s57, v4")
    a(f"ds_write_b128 v11, {vr(52)}")
    a(f"ds_write_b32 v14, v48 offset:{LDS_LS-LDS_MX}")
    a("v_bfe_u32 v16, v1, 2, 2")
    a("v_lshrrev_b32 v17, 5, v1")
    a("v_lshl_add_u32 v18, v17, 2, v16")
    a("v_lshlrev_b32 v18, 10, v18")
    a("v_and_b32 v19, 1, v1")
    a("v_lshl_add_u32 v18, v19, 3, v18")
    a(f"s_lshr_b32 s56, s{S_WAVE}, 1")
    a("s_lshl_b32 s56, s56, 8")
    a("v_add_u32 v18, s56, v18")
    a("v_bfe_u32 v19, v1, 4, 1")
    a("v_bfe_u32 v20, v1, 1, 1")
    a("v_lshl_add_u32 v19, v19, 1, v20")
    a("v_xor_b32 v19, v19, v17")
    a(f"s_and_b32 s56, s{S_WAVE}, 1")
    a("s_lshl_b32 s56, s56, 1")
    a("v_xor_b32 v20, s56, v16")
    a("v_lshl_add_u32 v19, v20, 2, v19")
    a("v_lshl_add_u32 v18, v19, 4, v18")
    PA = 20
    a(f"v_mov_b32 v{PA}, v18")
    a(f"v_xor_b32 v{PA+1}, 32, v18")
    a(f"v_add_u32 v{PA+1}, 8192, v{PA+1}")
    a(f"v_xor_b32 v{PA+2}, 64, v{PA}")
    a(f"v_xor_b32 v{PA+3}, 64, v{PA+1}")
    for k in range(4):
        a(f"v_add_u32 v{PA+4+k}, 65536, v{PA+k}")
    a("s_waitcnt lgkmcnt(0)")
    a("s_barrier")
    stamp(a, 6)
    PF = 64
    a(f"v_add_u32 v11, {LDS_PB}, v4")
    for sg_ in range(8):
        a(f"ds_read_b128 {vr(PF+4*sg_)}, v11 offset:{1024*sg_}")
    VF = 128
    for sg_ in range(8):
        for T in range(2):
            for u in range(2):
                reg = VF + (sg_ * 2 + T) * 4 + 2 * u
                adr = PA + (4 if sg_ >= 4 else 0) + T * 2 + u
                a(f"ds_read_b64_tr_b16 v[{reg}:{reg+1}], v{adr} offset:{16384*(sg_&3)}")
    O = 32
    for sg_ in range(8):
        for T in range(2):
            done_needed = 8 + (sg_ * 2 + T + 1) * 2
            remaining = 40 - done_needed
            a(f"s_waitcnt lgkmcnt({min(remaining, 15)})")
            c = "0" if sg_ == 0 else vr(O + 16 * T, 16)
            a(f"v_mfma_f32_32x32x16_bf16 {vr(O+16*T,16)}, {vr(VF+(sg_*2+T)*4)}, {vr(PF+4*sg_)}, {c}")
    stamp(a, 7)
    a(f"v_add_u32 v15, {LDS_LS}, v13")
    a(f"ds_read_b128 {vr(64)}, v15")
    a(f"ds_read_b128 {vr(68)}, v15 offset:16")
    a("s_waitcnt lgkmcnt(0)")
    a("s_barrier")
    a("v_add_f32 v64, v64, v65")
    a("v_add_f32 v66, v66, v67")
    a("v_add_f32 v68, v68, v69")
    a("v_add_f32 v70, v70, v71")
    a("v_add_f32 v64, v64, v66")
    a("v_add_f32 v68, v68, v70")
    a("v_add_f32 v64, v64, v68")
    a("v_rcp_f32 v65, v64")
    a("v_log_f32 v66, v64")
    a("v_add_f32 v29, v28, v66")
    for r in range(32):
        a(f"v_mul_f32 v{O+r}, v{O+r}, v65")
    a("v_mul_u32_u24 v16, 1040, v6")
    a("v_lshl_add_u32 v16, v17, 3, v16")
    a(f"s_lshl_b32 s56, s{S_WAVE}, 7")
    a("v_add_u32 v16, s56, v16")
    for T in range(2):
        for g in range(4):
            r0 = O + 16 * T + 4 * g
            a(f"v_cvt_pk_bf16_f32 v{r0}, v{r0}, v{r0+1}")
            a(f"v_cvt_pk_bf16_f32 v{r0+1}, v{r0+2}, v{r0+3}")
            a(f"ds_write_b64 v16, v[{r0}:{r0+1}] offset:{64*T+16*g}")
    a("s_waitcnt lgkmcnt(0)")
    a("s_barrier")
    a(f"s_mul_i32 s56, s{S_WAVE}, {4*1040}")
    a("v_add_u32 v16, s56, v4")
    for k in range(4):
        a(f"ds_read_b128 {vr(64+4*k)}, v16 offset:{1040*k}")
    srd(a, SRD_C, P_WS, 4194304, WS_OP)
    srd(a, SRD_D, P_WS, 16384, WS_LSE)
    a("v_lshlrev_b32 v17, 15, v3")
    a("v_lshl_add_u32 v17, v2, 4, v17")
    a(f"s_lshl_b32 s56, s{S_WAVE}, 19")
    a(f"s_lshl_b32 s57, s{idx}, 8")
    a("s_add_u32 s56, s56, s57")
    for k in range(4):
        a(f"s_waitcnt lgkmcnt({3-k})")
        a(f"buffer_store_dwordx4 {vr(64+4*k)}, v17, {sr(SRD_C)}, s56 offen sc1")
        if k < 3:
            a("s_add_u32 s56, s56, 131072")
    a("v_lshlrev_b32 v17, 2, v6")
    a(f"s_lshl_b32 s57, s{idx}, 7")
    a("v_lshrrev_b32 v18, 2, v1")
    a(f"v_cmp_eq_u32 vcc, s{S_WAVE}, v18")
    a("s_and_saveexec_b64 s[60:61], vcc")
    a(f"buffer_store_dword v29, v17, {sr(SRD_D)}, s57 offen sc1")
    a("s_mov_b64 exec, s[60:61]")
    a(f"s_lshl_b32 s59, s{idx}, 3")
    a(f"s_add_u32 s59, s59, s{S_WAVE}")
    a(f"s_add_u32 s59, s59, {F_O}")
    a("s_lshl_b32 s59, s59, 6")
    stamp(a, 8)
    a("s_waitcnt vmcnt(0)")
    set_flag(a, 59, 8)
    stamp(a, 9)


def final(a):
    idx = S_IDX
    a(f"s_bfe_u32 s54, s{idx}, 0x20002")
    a(f"s_lshl_b32 s55, s{S_WAVE}, 4")
    a("v_and_b32 v5, 15, v1")
    a("v_add_u32 v5, s55, v5")
    a("v_bfe_u32 v6, v1, 4, 1")
    a("v_cmp_lt_u32 vcc, 111, v5")
    a("v_cndmask_b32 v6, v6, 0, vcc")
    a("v_lshlrev_b32 v5, 2, v5")
    a(f"v_mul_u32_u24 v6, {F_Y-F_S}, v6")
    a(f"s_add_u32 s54, s54, {F_S}")
    a("v_add3_u32 v5, v5, v6, s54")
    a("v_lshlrev_b32 v5, 6, v5")
    a("v_lshrrev_b32 v7, 3, v1")
    a("v_lshlrev_b32 v7, 12, v7")
    a("v_and_b32 v26, 7, v1")
    a("v_lshl_add_u32 v7, v26, 4, v7")
    a(f"s_lshl_b32 s52, s{idx}, 7")
    a(f"s_lshl_b32 s53, s{S_WAVE}, 16")
    a("s_add_u32 s53, s53, s52")
    a("s_add_u32 s54, s53, 32768")
    srd(a, SRD_A, P_WS, 128 * 4096, WS_SP)
    srd(a, SRD_B, P_WS, 112 * 4096, WS_YP)
    srd(a, SRD_C, P_X, 2048)
    a("v_lshlrev_b32 v27, 1, v1")
    a(f"s_lshl_b32 s55, s{idx}, 6")
    a(f"buffer_load_ushort v24, v27, {sr(SRD_C)}, s55 offen")
    poll(a, 5, 6)
    stamp(a, 10)
    a(f"buffer_load_dwordx4 v[8:11], v7, {sr(SRD_A)}, s53 offen sc1")
    a(f"buffer_load_dwordx4 v[12:15], v7, {sr(SRD_A)}, s54 offen sc1")
    a(f"buffer_load_dwordx4 v[16:19], v7, {sr(SRD_B)}, s53 offen sc1")
    a(f"buffer_load_dwordx4 v[20:23], v7, {sr(SRD_B)}, s54 offen sc1")
    a("s_waitcnt vmcnt(0)")
    for r in range(4):
        a(f"v_add_f32 v{8+r}, v{8+r}, v{12+r}")
        a(f"v_add_f32 v{16+r}, v{16+r}, v{20+r}")
    regs = [8, 9, 10, 11, 16, 17, 18, 19]
    tm = [32 + k for k in range(8)]
    for r in regs:
        a(f"v_add_f32_dpp v{r}, v{r}, v{r} row_ror:8 row_mask:0xf bank_mask:0xf")
    for sw in (16, 32):
        for r, t in zip(regs, tm):
            a(f"v_mov_b32 v{t}, v{r}")
        for r, t in zip(regs, tm):
            a(f"v_permlane{sw}_swap_b32 v{r}, v{t}")
        for r, t in zip(regs, tm):
            a(f"v_add_f32 v{r}, v{r}, v{t}")
    FIN = LDS_SC + 28672
    a(f"s_lshl_b32 s56, s{S_WAVE}, 8")
    a(f"s_add_u32 s56, s56, {FIN}")
    a("v_lshl_add_u32 v25, v26, 4, s56")
    a("v_cmp_gt_u32 vcc, 8, v1")
    a("s_and_saveexec_b64 s[60:61], vcc")
    a("ds_write_b128 v25, v[8:11]")
    a("ds_write_b128 v25, v[16:19] offset:128")
    a("s_mov_b64 exec, s[60:61]")
    a("s_waitcnt lgkmcnt(0)")
    a("s_barrier")
    lab = f"Lfin_done{uid()}"
    a(f"s_cmp_lg_u32 s{S_WAVE}, 0")
    a(f"s_cbranch_scc1 {lab}")
    a("v_lshlrev_b32 v25, 2, v1")
    a(f"v_add_u32 v25, {FIN}, v25")
    for k in range(8):
        a(f"ds_read_b32 v{8+k}, v25 offset:{256*k}")
    a("s_waitcnt lgkmcnt(0)")
    a("v_add_f32 v8, v8, v9")
    a("v_add_f32 v10, v10, v11")
    a("v_add_f32 v12, v12, v13")
    a("v_add_f32 v14, v14, v15")
    a("v_add_f32 v8, v8, v10")
    a("v_add_f32 v12, v12, v14")
    a("v_add_f32 v8, v8, v12")
    a("v_mov_b32 v9, v8")
    a("v_permlane32_swap_b32 v8, v9")
    a(f"v_mul_f32 v10, {f2u(-1.4426950408889634)}, v9")
    a("v_exp_f32 v10, v10")
    a("v_add_f32 v10, 1.0, v10")
    a("v_rcp_f32 v10, v10")
    a("v_mul_f32 v9, v9, v10")
    a("v_lshlrev_b32 v24, 16, v24")
    a("v_fma_f32 v8, v8, v9, v24")
    a("v_cvt_pk_bf16_f32 v8, v8, v8")
    srd(a, SRD_D, P_OUT, 2048)
    a("v_cmp_gt_u32 vcc, 32, v1")
    a("s_and_saveexec_b64 s[60:61], vcc")
    a(f"buffer_store_short v8, v27, {sr(SRD_D)}, s55 offen")
    a("s_mov_b64 exec, s[60:61]")
    a(f"s_cmp_lg_u32 s{idx}, 0")
    a(f"s_cbranch_scc1 {lab}")
    srd(a, SRD_E, P_WS, 64, WS_EPOCH)
    a(f"v_mov_b32 v8, s{S_EPOCH}")
    a("v_mov_b32 v9, 0")
    a("s_mov_b64 exec, 1")
    a(f"buffer_store_dword v8, v9, {sr(SRD_E)}, 0 offen sc1")
    a("s_mov_b64 exec, -1")
    a.label(lab)
    stamp(a, 11)


def body(a):
    stamp_init(a)
    stamp(a, 0)
    a("s_load_dwordx16 s[4:19], s[0:1], 0")
    a("s_load_dwordx8 s[20:27], s[0:1], 64")
    a("s_load_dwordx2 s[28:29], s[0:1], 96")
    a("s_cmp_ge_u32 s2, 256")
    a("s_cbranch_scc1 Lend")
    a("s_and_b32 s54, s2, 7")
    a("s_lshr_b32 s55, s2, 4")
    a("s_lshl_b32 s55, s55, 3")
    a(f"s_or_b32 s{S_IDX}, s54, s55")
    a("v_lshrrev_b32 v2, 6, v0")
    a("v_and_b32 v1, 63, v0")
    a(f"v_readfirstlane_b32 s{S_WAVE}, v2")
    a("v_and_b32 v2, 15, v1")
    a("v_lshrrev_b32 v3, 4, v1")
    a("v_lshlrev_b32 v4, 4, v1")
    a("s_bitcmp1_b32 s2, 3")
    a("s_cbranch_scc1 Latt")
    a(f"s_and_b32 s{S_H}, s{S_IDX}, 7")
    a(f"s_lshr_b32 s54, s{S_IDX}, 5")
    a(f"s_lshl_b32 s54, s54, 3")
    a(f"s_add_u32 s{S_H}, s{S_H}, s54")
    a(f"s_lshr_b32 s{S_QQ}, s{S_IDX}, 3")
    a(f"s_and_b32 s{S_QQ}, s{S_QQ}, 3")
    wgt_q_pre = None
    wgt_q(a)
    wgt_gu(a)
    wgt_issue_rest(a)
    wgt_down(a)
    wgt_post(a)
    stamp_flush(a)
    a("s_endpgm")
    a.label("Latt")
    att(a)
    a(f"s_cmp_ge_u32 s{S_IDX}, 32")
    a("s_cbranch_scc1 Latt_end")
    final(a)
    a.label("Latt_end")
    stamp_flush(a)
    a.label("Lend")


def main(out):
    a = Asm()
    name = NAME + "_kernel"
    a.raw("; @launch grid=(256,1,1) block=(512,1,1) lds=163840")
    a.raw('.amdgcn_target "amdgcn-amd-amdhsa--gfx950"')
    a.raw(".text")
    a.raw(f".globl {name}")
    a.raw(".p2align 8")
    a.raw(f".type {name},@function")
    a.raw(f"{name}:")
    body(a)
    a("s_endpgm")
    a.raw('.section .rodata,"a"')
    a.raw(".p2align 6")
    a.raw(f""".amdhsa_kernel {name}
  .amdhsa_next_free_vgpr 256
  .amdhsa_next_free_sgpr 102
  .amdhsa_accum_offset 256
  .amdhsa_group_segment_fixed_size 0
  .amdhsa_kernarg_size 104
  .amdhsa_user_sgpr_count 2
  .amdhsa_user_sgpr_kernarg_segment_ptr 1
  .amdhsa_system_sgpr_workgroup_id_x 1
.end_amdhsa_kernel""")
    open(out, "w").write(a.text())
    print("wrote", out, "nops inserted:", a.nops_inserted)


if __name__ == "__main__":
    out = sys.argv[1] if len(sys.argv) > 1 else "p.s"
    for kv in sys.argv[2:]:
        k, v = kv.split("=")
        OPT[k] = int(v)
    main(out)
```

```python
import sys, struct
from asmlib import Asm

NAME = "recurrent_scan__compressed_kv_cla__glu_gated_reglu__decode"

WS_QA = 0x000000
WS_GU = 0x600000
WS_STAT = 0x030000
WS_EPOCH = 0x038000
WS_SP = 0x040000
WS_YP = 0x680000
WS_ST = 0x140000
WS_FLAG = 0x180000
F_Q = 0
F_G = F_Q + 128
F_Y = F_G + 128
NFLAG = F_Y + 512
WS_QP = 0x1A0000
WS_OP = 0x200000

P_X, P_KV, P_WQ, P_WUK, P_WUV, P_WO, P_BX, P_WG = 4, 6, 8, 10, 12, 14, 16, 18
P_WU, P_WD, P_OUT, P_DBG, P_WS = 20, 22, 24, 26, 28
S_EPOCH = 3
S_WAVE = 30
S_IDX = 31
SRD_A, SRD_B, SRD_C, SRD_D, SRD_E = 32, 36, 40, 44, 48
SRD_F = 96
S_H, S_QQ = 52, 53
S_SPIN = 100

QSCALE = (128 ** -0.5) * 1.4426950408889634
SPIN_MAX = 20000

OPT = dict(nt_w=1, nt_kv=1, nt_wo=0, stamps=0, stamp_wave=0, kvwin=0)


def f2u(x):
    return "0x%08x" % struct.unpack("<I", struct.pack("<f", x))[0]


def vr(n, k=4):
    return "v[%d:%d]" % (n, n + k - 1) if k > 1 else "v%d" % n


def sr(n, k=4):
    return "s[%d:%d]" % (n, n + k - 1)


_uid = [0]


def uid():
    _uid[0] += 1
    return _uid[0]


def srd(a, dst, ptr, size, off=0):
    if off:
        a(f"s_add_u32 s{dst}, s{ptr}, {off}")
        a(f"s_addc_u32 s{dst+1}, s{ptr+1}, 0")
    else:
        a(f"s_mov_b32 s{dst}, s{ptr}")
        a(f"s_mov_b32 s{dst+1}, s{ptr+1}")
    a(f"s_mov_b32 s{dst+2}, {size}")
    a(f"s_mov_b32 s{dst+3}, 0x20000")


def allreduce(a, op, regs, tmps):
    for dpp in ["quad_perm:[1,0,3,2]", "quad_perm:[2,3,0,1]", "row_half_mirror", "row_mirror"]:
        for r in regs:
            a(f"{op}_dpp v{r}, v{r}, v{r} {dpp} row_mask:0xf bank_mask:0xf")
    for sw in (16, 32):
        for r, t in zip(regs, tmps):
            a(f"v_mov_b32 v{t}, v{r}")
        for r, t in zip(regs, tmps):
            a(f"v_permlane{sw}_swap_b32 v{r}, v{t}")
        for r, t in zip(regs, tmps):
            a(f"{op} v{r}, v{r}, v{t}")


def make_masks(a, m0, t0, t1):
    a(f"v_and_b32 v{t0}, 1, v1")
    a(f"v_cmp_eq_u32 vcc, 1, v{t0}")
    a(f"v_mov_b32 v{t0}, 0xffff")
    a(f"v_mov_b32 v{t1}, 0xffff0000")
    a(f"v_cndmask_b32 v{t0}, v{t0}, v{t1}, vcc")
    a(f"v_bfe_u32 v{t1}, v1, 1, 2")
    for k in range(4):
        a(f"v_cmp_eq_u32 vcc, {k}, v{t1}")
        a(f"v_cndmask_b32 v{m0+k}, 0, v{t0}, vcc")


def ln_stats(a, x0, x1, u0, mean, rstd, t):
    for b, x in enumerate((x0, x1)):
        for k in range(4):
            a(f"v_lshlrev_b32 v{u0+8*b+2*k}, 16, v{x+k}")
            a(f"v_and_b32 v{u0+8*b+2*k+1}, 0xffff0000, v{x+k}")
    s0, s1, q0, q1, ta, tb = t, t + 1, t + 2, t + 3, t + 4, t + 5
    for k in range(1, 8):
        for b, s in enumerate((s0, s1)):
            u = u0 + 8 * b
            if k == 1:
                a(f"v_add_f32 v{s}, v{u}, v{u+1}")
            else:
                a(f"v_add_f32 v{s}, v{s}, v{u+k}")
    allreduce(a, "v_add_f32", [s0, s1], [ta, tb])
    a(f"v_mul_f32 v{s0}, {f2u(1.0/512)}, v{s0}")
    a(f"v_mul_f32 v{s1}, {f2u(1.0/512)}, v{s1}")
    for k in range(8):
        for b, s in enumerate((s0, s1)):
            u = u0 + 8 * b
            a(f"v_sub_f32 v{u+k}, v{u+k}, v{s}")
    for k in range(8):
        for b, q in enumerate((q0, q1)):
            u = u0 + 8 * b
            if k == 0:
                a(f"v_mul_f32 v{q}, v{u}, v{u}")
            else:
                a(f"v_fmac_f32 v{q}, v{u+k}, v{u+k}")
    allreduce(a, "v_add_f32", [q0, q1], [ta, tb])
    a(f"v_mov_b32 v{ta}, {f2u(1e-5)}")
    a(f"v_mov_b32 v{tb}, {f2u(1.0/512)}")
    a(f"v_fma_f32 v{q0}, v{q0}, v{tb}, v{ta}")
    a(f"v_fma_f32 v{q1}, v{q1}, v{tb}, v{ta}")
    a(f"v_rsq_f32 v{q0}, v{q0}")
    a(f"v_rsq_f32 v{q1}, v{q1}")
    a(f"v_and_b32 v{ta}, 8, v1")
    a(f"v_cmp_ne_u32 vcc, 0, v{ta}")
    a(f"v_cndmask_b32 v{mean}, v{s0}, v{s1}, vcc")
    a(f"v_cndmask_b32 v{rstd}, v{q0}, v{q1}, vcc")


def norm_dup(a, src, n, dst, mean, rstd):
    for k in range(n // 2):
        a(f"v_lshlrev_b32 v{dst+2*k}, 16, v{src+k}")
        a(f"v_and_b32 v{dst+2*k+1}, 0xffff0000, v{src+k}")
    for k in range(n):
        a(f"v_sub_f32 v{dst+k}, v{dst+k}, v{mean}")
    for k in range(n):
        a(f"v_mul_f32 v{dst+k}, v{dst+k}, v{rstd}")
    for k in range(n):
        a(f"v_cvt_pk_bf16_f32 v{dst+k}, v{dst+k}, v{dst+k}")


def afrags(a, dup, n, masks, dst):
    for i in range(n):
        for k in range(4):
            a(f"v_and_b32 v{dst+4*i+k}, v{dup+i}, v{masks+k}")


def reduceN(a, rd_addr, base_off, dst, tmp, n=8, stride=1024):
    for k in range(n):
        a(f"ds_read_b128 {vr(tmp+4*k)}, v{rd_addr} offset:{base_off + k*stride}")
    cur = [tmp + 4 * k for k in range(n)]
    left = n
    first = True
    while len(cur) > 1:
        nxt = []
        for p in range(0, len(cur), 2):
            if first:
                a(f"s_waitcnt lgkmcnt({n - p - 2})")
            for r in range(4):
                d = dst + r if len(cur) == 2 else cur[p] + r
                a(f"v_add_f32 v{d}, v{cur[p]+r}, v{cur[p+1]+r}")
            nxt.append(cur[p])
        cur = nxt
        first = False


def NT(flag):
    return " nt" if flag else ""


NST = 16


def stamp(a, k):
    if not OPT["stamps"]:
        return
    a(f"s_memrealtime s[{64+2*k}:{65+2*k}]")


def stamp_init(a):
    if not OPT["stamps"]:
        return
    for k in range(NST):
        a(f"s_mov_b64 s[{64+2*k}:{65+2*k}], 0")


def stamp_flush(a):
    if not OPT["stamps"]:
        return
    lab = f"Lst{uid()}"
    a(f"s_cmp_lg_u32 s{S_WAVE}, {OPT['stamp_wave']}")
    a(f"s_cbranch_scc1 {lab}")
    a("s_waitcnt vmcnt(0) lgkmcnt(0)")
    a(f"s_memrealtime s[{64+2*(NST-1)}:{65+2*(NST-1)}]")
    a(f"s_lshl_b32 s54, s2, 7")
    a(f"s_add_u32 s54, s54, {WS_ST}")
    a(f"s_add_u32 s56, s{P_WS}, s54")
    a(f"s_addc_u32 s57, s{P_WS+1}, 0")
    a("s_mov_b64 exec, 1")
    a("v_mov_b32 v0, 0")
    a("s_waitcnt lgkmcnt(0)")
    for k in range(NST):
        a(f"v_mov_b32 v2, s{64+2*k}")
        a(f"v_mov_b32 v3, s{65+2*k}")
        a(f"global_store_dwordx2 v0, v[2:3], s[56:57] offset:{8*k}")
    a("s_mov_b64 exec, -1")
    a.label(lab)


class Spin:
    def __init__(self, a):
        self.a = a
        self.n = uid()

    def begin(self):
        self.a(f"s_mov_b32 s{S_SPIN}, {SPIN_MAX}")
        self.a.label(f"Lspin{self.n}")

    def end(self):
        a = self.a
        a("s_cmp_eq_u64 vcc, 0")
        a(f"s_cbranch_scc1 Lspind{self.n}")
        a(f"s_sub_u32 s{S_SPIN}, s{S_SPIN}, 1")
        a(f"s_cmp_lg_u32 s{S_SPIN}, 0")
        a(f"s_cbranch_scc1 Lspin{self.n}")
        a.label(f"Lspind{self.n}")
        a("s_nop 0")


def poll_flags(a, voff, tmp, nloads=1, second_off=0):
    sp = Spin(a)
    sp.begin()
    a(f"buffer_load_dword v{tmp}, v{voff}, {sr(SRD_F)}, 0 offen sc1")
    if nloads == 2:
        a(f"s_mov_b32 s101, {second_off}")
        a(f"buffer_load_dword v{tmp+1}, v{voff}, {sr(SRD_F)}, s101 offen sc1")
    a("s_waitcnt vmcnt(0)")
    a(f"v_cmp_ne_u32 vcc, s{S_EPOCH}, v{tmp}")
    if nloads == 2:
        a(f"v_cmp_ne_u32 s[60:61], s{S_EPOCH}, v{tmp+1}")
        a("s_or_b64 vcc, vcc, s[60:61]")
    sp.end()


def set_flag(a, soff_sgpr, vtmp):
    a(f"v_mov_b32 v{vtmp}, s{S_EPOCH}")
    a(f"v_mov_b32 v{vtmp+1}, 0")
    a("s_mov_b64 s[60:61], exec")
    a("s_mov_b64 exec, 1")
    a(f"buffer_store_dword v{vtmp}, v{vtmp+1}, {sr(SRD_F)}, s{soff_sgpr} offen sc1")
    a("s_mov_b64 exec, s[60:61]")


def sentinel_check(a, regs, t):
    cur = list(regs)
    first = True
    while len(cur) > 1:
        if len(cur) >= 3:
            x, y, z = cur[:3]
            cur = cur[3:]
            a(f"v_max3_u32 v{t}, v{x}, v{y}, v{z}")
        else:
            x, y = cur[:2]
            cur = cur[2:]
            a(f"v_max_u32 v{t}, v{x}, v{y}")
        cur = [t] + cur
    a(f"v_cmp_eq_u32 vcc, -1, v{cur[0]}")


def tagged_store(a, src, tmp, vaddr, srd_, soff):
    for r in range(4):
        a(f"v_mov_b32 v{tmp+2*r}, v{src+r}")
        a(f"v_mov_b32 v{tmp+2*r+1}, s{S_EPOCH}")
    a(f"buffer_store_dwordx4 {vr(tmp)}, v{vaddr}, {sr(srd_)}, s{soff} offen sc1")
    a(f"buffer_store_dwordx4 {vr(tmp+4)}, v{vaddr}, {sr(srd_)}, s{soff} offen offset:16 sc1")


def tag_check(a, tags, t0, t1):
    a(f"v_xor_b32 v{t0}, s{S_EPOCH}, v{tags[0]}")
    for k in tags[1:]:
        a(f"v_xor_b32 v{t1}, s{S_EPOCH}, v{k}")
        a(f"v_or_b32 v{t0}, v{t0}, v{t1}")
    a(f"v_cmp_ne_u32 vcc, 0, v{t0}")


L_RED0 = 0
L_QB = 8192
L_QG = 9216
L_REDG = 16384
L_REDD = 24576
L_R1 = 32768
L_R2 = 40960
L_WUK = 65536
L_R3 = 98304

MASK = 24
MEAN, RSTD = 30, 31


def wgt_clears(a):
    srd(a, SRD_D, P_WS, 4194304, WS_OP)
    for r in range(4):
        a(f"v_mov_b32 v{56+r}, -1")
    a(f"s_lshl_b32 s56, s{S_H}, 2")
    a(f"s_add_u32 s56, s56, s{S_QQ}")
    a("s_lshl_b32 s56, s56, 15")
    a(f"s_lshl_b32 s57, s{S_WAVE}, 12")
    a("s_add_u32 s56, s56, s57")
    for i in range(4):
        a(f"buffer_store_dwordx4 v[56:59], v4, {sr(SRD_D)}, s56 offen offset:{1024*i} sc1")
    srd(a, SRD_E, P_WS, 32768, WS_STAT)
    a(f"s_lshl_b32 s56, s{S_IDX}, 8")
    a(f"s_lshl_b32 s57, s{S_WAVE}, 5")
    a("s_add_u32 s56, s56, s57")
    a("s_mov_b64 exec, 3")
    a(f"buffer_store_dwordx4 v[56:59], v4, {sr(SRD_E)}, s56 offen sc1")
    a("s_mov_b64 exec, -1")


def wgt_q(a):
    a("v_and_b32 v5, 8, v1")
    a("v_lshlrev_b32 v5, 7, v5")
    a("v_lshl_add_u32 v5, v3, 3, v5")
    a("v_lshlrev_b32 v6, 15, v3")
    a("v_lshl_add_u32 v6, v2, 4, v6")
    a("v_xor_b32 v7, v2, v3")
    a("v_lshlrev_b32 v61, 4, v7")
    a("v_lshl_add_u32 v7, v3, 13, v61")
    a("v_lshl_add_u32 v61, v2, 8, v61")
    a(f"s_lshl_b32 s54, s{S_QQ}, 7")
    a(f"s_lshl_b32 s55, s{S_WAVE}, 4")
    a("s_add_u32 s54, s54, s55")
    a("s_lshl_b32 s55, s54, 1")
    a("s_lshl_b32 s56, s54, 13")
    a(f"s_lshl_b32 s57, s{S_H}, 8")
    a("s_add_u32 s56, s56, s57")
    a("s_mov_b32 s58, s56")
    make_masks(a, MASK, 28, 29)
    a("s_waitcnt lgkmcnt(0)")
    a(f"s_load_dword s{S_EPOCH}, s[{P_WS}:{P_WS+1}], {WS_EPOCH}")
    srd(a, SRD_A, P_X, 2048)
    a(f"buffer_load_dwordx4 v[8:11], v4, {sr(SRD_A)}, 0 offen")
    a(f"buffer_load_dwordx4 v[12:15], v4, {sr(SRD_A)}, 0 offen offset:1024")
    a(f"buffer_load_dwordx2 v[16:17], v5, {sr(SRD_A)}, s55 offen")
    srd(a, SRD_B, P_WQ, 4194304)
    WQ, AF = 64, 96
    for i in range(4):
        a(f"buffer_load_dwordx4 {vr(WQ+4*i)}, v6, {sr(SRD_B)}, s56 offen{NT(OPT['nt_w'])}")
        if i < 3:
            a("s_add_u32 s56, s56, 8192")
    srd(a, SRD_C, P_WUK, 4194304)
    a(f"s_lshl_b32 s59, s{S_WAVE}, 12")
    a(f"s_add_u32 s59, s59, {L_WUK}")
    for i in range(4):
        a(f"s_add_u32 m0, s59, {1024*i}")
        a(f"v_xor_b32 v60, {64*i}, v7")
        a(f"buffer_load_dwordx4 v60, {sr(SRD_C)}, s58 offen{NT(OPT['nt_w'])} lds")
        if i < 3:
            a("s_add_u32 s58, s58, 32768")
    a("v_add_u32 v61, s59, v61")
    a("s_barrier")
    wgt_clears(a)
    srd(a, SRD_F, P_WS, NFLAG * 64, WS_FLAG)
    a("s_waitcnt vmcnt(14)")
    stamp(a, 1)
    ln_stats(a, 8, 12, 32, MEAN, RSTD, 48)
    DUP = 32
    a("s_waitcnt vmcnt(13)")
    norm_dup(a, 16, 4, DUP, MEAN, RSTD)
    afrags(a, DUP, 4, MASK, AF)
    ACC = 52
    for i in range(4):
        a(f"s_waitcnt vmcnt({12-i})")
        c = "0" if i == 0 else vr(ACC)
        a(f"v_mfma_f32_16x16x32_bf16 {vr(ACC)}, {vr(AF+4*i)}, {vr(WQ+4*i)}, {c}")
    stamp(a, 2)
    a(f"s_lshl_b32 s59, s{S_WAVE}, 10")
    a("v_add_u32 v8, s59, v4")
    a(f"ds_write_b128 v8, {vr(ACC)} offset:{L_RED0}")
    srd(a, SRD_B, P_WS, 128 * 2048, WS_QP)
    a("v_lshlrev_b32 v9, 5, v1")
    a(f"s_lshl_b32 s56, s{S_H}, 13")
    a(f"s_lshl_b32 s57, s{S_QQ}, 11")
    a("s_add_u32 s57, s57, s56")
    a("s_waitcnt lgkmcnt(0)")
    a(f"s_add_u32 s{S_EPOCH}, s{S_EPOCH}, 1")
    a("s_barrier")
    stamp(a, 3)
    notw0 = f"Lq_nw0{uid()}"
    others = f"Lq_oth{uid()}"
    a(f"s_cmp_lg_u32 s{S_WAVE}, 0")
    a(f"s_cbranch_scc1 {others}")
    reduceN(a, 4, L_RED0, ACC, 64)
    a(f"v_mov_b32 v64, v{ACC}")
    a(f"v_mov_b32 v65, s{S_EPOCH}")
    a(f"v_mov_b32 v66, v{ACC+1}")
    a(f"v_mov_b32 v67, s{S_EPOCH}")
    a(f"v_mov_b32 v68, v{ACC+2}")
    a(f"v_mov_b32 v69, s{S_EPOCH}")
    a(f"v_mov_b32 v70, v{ACC+3}")
    a(f"v_mov_b32 v71, s{S_EPOCH}")
    a(f"buffer_store_dwordx4 v[64:67], v9, {sr(SRD_B)}, s57 offen sc1")
    a(f"buffer_store_dwordx4 v[68:71], v9, {sr(SRD_B)}, s57 offen offset:16 sc1")
    stamp(a, 4)
    sp = Spin(a)
    sp.begin()
    a("s_mov_b32 s57, s56")
    for k in range(4):
        a(f"buffer_load_dwordx4 {vr(72+8*k)}, v9, {sr(SRD_B)}, s57 offen sc1")
        a(f"buffer_load_dwordx4 {vr(76+8*k)}, v9, {sr(SRD_B)}, s57 offen offset:16 sc1")
        if k < 3:
            a("s_add_u32 s57, s57, 2048")
    a("s_waitcnt vmcnt(0)")
    a(f"v_mov_b32 v10, s{S_EPOCH}")
    tags = [73 + 2 * k for k in range(16)]
    a(f"v_xor_b32 v11, v{tags[0]}, v10")
    for k in range(1, 16):
        a(f"v_xor_b32 v12, v{tags[k]}, v10")
        a("v_or_b32 v11, v11, v12")
    a("v_cmp_ne_u32 vcc, 0, v11")
    sp.end()
    stamp(a, 5)
    for r in range(4):
        a(f"v_add_f32 v{72+2*r}, v{72+2*r}, v{80+2*r}")
        a(f"v_add_f32 v{88+2*r}, v{88+2*r}, v{96+2*r}")
    for r in range(4):
        a(f"v_add_f32 v{72+2*r}, v{72+2*r}, v{88+2*r}")
    a(f"v_cvt_pk_bf16_f32 v{ACC}, v72, v74")
    a(f"v_cvt_pk_bf16_f32 v{ACC+1}, v76, v78")
    a("v_lshrrev_b32 v9, 5, v1")
    a("v_lshlrev_b32 v9, 8, v9")
    a("v_lshl_add_u32 v9, v2, 4, v9")
    a("v_and_b32 v10, 1, v3")
    a("v_lshl_add_u32 v9, v10, 3, v9")
    a(f"ds_write_b64 v9, v[{ACC}:{ACC+1}] offset:{L_QB}")
    a(f"s_branch {notw0}")
    a.label(others)
    a("s_waitcnt vmcnt(0)")
    a.label(notw0)
    WUK = 112
    for s in range(4):
        a(f"v_xor_b32 v60, {64*s}, v61")
        a(f"ds_read_b128 {vr(WUK+4*s)}, v60")
    a("v_and_b32 v10, 1, v1")
    a("v_lshlrev_b32 v10, 8, v10")
    a("v_lshl_add_u32 v10, v3, 4, v10")
    a("s_waitcnt lgkmcnt(0)")
    a("s_barrier")
    stamp(a, 6)
    QF = 64
    for s in range(4):
        a(f"ds_read_b128 {vr(QF+4*s)}, v10 offset:{L_QB + 64*s}")
    ACC2 = 56
    for s in range(4):
        a(f"s_waitcnt lgkmcnt({3-s})")
        c = "0" if s == 0 else vr(ACC2)
        a(f"v_mfma_f32_16x16x32_bf16 {vr(ACC2)}, {vr(WUK+4*s)}, {vr(QF+4*s)}, {c}")
    a(f"s_mov_b32 s59, {f2u(QSCALE)}")
    a(f"s_lshl_b32 s58, s{S_WAVE}, 5")
    a("v_lshlrev_b32 v9, 8, v2")
    a("v_lshl_add_u32 v9, v3, 3, v9")
    a("v_add_u32 v9, s58, v9")
    a("v_cmp_gt_u32 vcc, 2, v2")
    for r in range(4):
        a(f"v_mul_f32 v{ACC2+r}, s59, v{ACC2+r}")
    a(f"v_cvt_pk_bf16_f32 v{ACC2}, v{ACC2}, v{ACC2+1}")
    a(f"v_cvt_pk_bf16_f32 v{ACC2+1}, v{ACC2+2}, v{ACC2+3}")
    a("s_and_saveexec_b64 s[60:61], vcc")
    a(f"ds_write_b64 v9, v[{ACC2}:{ACC2+1}] offset:{L_QG}")
    a("s_mov_b64 exec, s[60:61]")
    a("s_waitcnt lgkmcnt(0)")
    a("s_barrier")
    lab = f"Lq_done{uid()}"
    a(f"s_cmp_lg_u32 s{S_WAVE}, 0")
    a(f"s_cbranch_scc1 {lab}")
    srd(a, SRD_D, P_WS, 65536, WS_QA)
    a(f"ds_read_b128 v[8:11], v4 offset:{L_QG}")
    a("v_lshlrev_b32 v12, 15, v3")
    a("v_lshl_add_u32 v12, v2, 4, v12")
    a(f"s_lshl_b32 s59, s{S_H}, 10")
    a(f"s_lshl_b32 s57, s{S_QQ}, 8")
    a("s_add_u32 s59, s59, s57")
    a("s_mov_b32 exec_hi, 0")
    a("s_waitcnt lgkmcnt(0)")
    a(f"buffer_store_dwordx4 v[8:11], v12, {sr(SRD_D)}, s59 offen sc1")
    a("s_mov_b64 exec, -1")
    a(f"s_lshl_b32 s59, s{S_IDX}, 6")
    a(f"s_add_u32 s59, s59, {F_Q*64}")
    stamp(a, 7)
    a("s_waitcnt vmcnt(0)")
    set_flag(a, 59, 8)
    a.label(lab)
    wgt_gu_issue(a)
    wgt_issue_rest(a)


GU_W = 192


def gu_decode(a):
    S_MAT, S_T, S_RQ = 54, 55, 56
    a(f"s_cmp_ge_u32 s{S_IDX}, 56")
    a(f"s_cselect_b32 s{S_MAT}, 1, 0")
    a(f"s_mul_i32 s57, s{S_MAT}, 56")
    a(f"s_sub_u32 s57, s{S_IDX}, s57")
    a(f"s_lshr_b32 s{S_T}, s57, 2")
    a(f"s_and_b32 s{S_RQ}, s57, 3")


def wgt_gu_issue(a):
    S_MAT, S_T, S_RQ = 54, 55, 56
    gu_decode(a)
    a("v_and_b32 v5, 8, v1")
    a("v_lshlrev_b32 v5, 7, v5")
    a("v_lshl_add_u32 v5, v3, 3, v5")
    a("v_mul_u32_u24 v6, 14336, v3")
    a("v_lshl_add_u32 v6, v2, 4, v6")
    a(f"s_lshl_b32 s57, s{S_RQ}, 7")
    a(f"s_lshl_b32 s58, s{S_WAVE}, 4")
    a("s_add_u32 s57, s57, s58")
    a("s_mul_i32 s58, s57, 3584")
    a(f"s_lshl_b32 s59, s{S_T}, 8")
    a("s_add_u32 s58, s58, s59")
    a("s_lshl_b32 s57, s57, 1")
    a(f"s_cmp_eq_u32 s{S_MAT}, 0")
    a(f"s_cselect_b32 s{SRD_B}, s{P_WG}, s{P_WU}")
    a(f"s_cselect_b32 s{SRD_B+1}, s{P_WG+1}, s{P_WU+1}")
    a(f"s_mov_b32 s{SRD_B+2}, {512*3584}")
    a(f"s_mov_b32 s{SRD_B+3}, 0x20000")
    a(f"buffer_load_dwordx2 v[208:209], v5, {sr(SRD_A)}, s57 offen")
    for i in range(4):
        a(f"buffer_load_dwordx4 {vr(GU_W+4*i)}, v6, {sr(SRD_B)}, s58 offen{NT(OPT['nt_w'])}")
        if i < 3:
            a("s_add_u32 s58, s58, 3584")


def wgt_gu(a):
    S_MAT, S_T, S_RQ = 54, 55, 56
    done = f"Lgu_done{uid()}"
    a(f"s_cmp_ge_u32 s{S_IDX}, 112")
    a(f"s_cbranch_scc1 {done}")
    AF = 96
    a("s_waitcnt vmcnt(26)")
    DUP = 32
    norm_dup(a, 208, 4, DUP, MEAN, RSTD)
    afrags(a, DUP, 4, MASK, AF)
    ACC = 52
    for i in range(4):
        a(f"s_waitcnt vmcnt({25-i})")
        c = "0" if i == 0 else vr(ACC)
        a(f"v_mfma_f32_16x16x32_bf16 {vr(ACC)}, {vr(AF+4*i)}, {vr(GU_W+4*i)}, {c}")
    a(f"s_lshl_b32 s59, s{S_WAVE}, 10")
    a("v_add_u32 v8, s59, v4")
    a(f"ds_write_b128 v8, {vr(ACC)} offset:{L_REDG}")
    a("s_waitcnt lgkmcnt(0)")
    a("s_barrier")
    a(f"s_cmp_lg_u32 s{S_WAVE}, 1")
    a(f"s_cbranch_scc1 {done}")
    gu_decode(a)
    reduceN(a, 4, L_REDG, ACC, 64)
    srd(a, SRD_D, P_WS, 4 * 2 * 2 * 1792 * 8, WS_GU)
    a("v_lshrrev_b32 v9, 5, v1")
    a("v_mul_u32_u24 v9, 28672, v9")
    a("v_lshl_add_u32 v9, v2, 6, v9")
    a("v_and_b32 v10, 1, v3")
    a("v_lshl_add_u32 v9, v10, 5, v9")
    a(f"s_mul_i32 s59, s{S_RQ}, {4*1792*8}")
    a(f"s_mul_i32 s57, s{S_MAT}, {1792*8}")
    a("s_add_u32 s59, s59, s57")
    a(f"s_lshl_b32 s57, s{S_T}, 10")
    a("s_add_u32 s59, s59, s57")
    tagged_store(a, ACC, 64, 9, SRD_D, 59)
    a.label(done)
    stamp(a, 8)


WD_R, WUV_R, WO_R = 224, 232, 128


def wgt_issue_rest(a):
    a(f"s_and_b32 s62, s{S_WAVE}, 3")
    a(f"s_lshr_b32 s63, s{S_WAVE}, 2")
    a("v_lshlrev_b32 v6, 11, v3")
    a("v_lshl_add_u32 v6, v2, 4, v6")
    a(f"s_lshl_b32 s54, s{S_IDX}, 4")
    a("s_lshl_b32 s55, s63, 3")
    a("s_add_u32 s54, s54, s55")
    a("s_lshl_b32 s56, s54, 10")
    a("s_lshl_b32 s57, s62, 8")
    a("s_add_u32 s56, s56, s57")
    srd(a, SRD_B, P_WD, 1792 * 1024)
    for i in range(2):
        a(f"buffer_load_dwordx4 {vr(WD_R+4*i)}, v6, {sr(SRD_B)}, s56 offen offset:{1024*i}{NT(OPT['nt_w'])}")
    a("v_lshlrev_b32 v7, 15, v3")
    a("v_lshl_add_u32 v7, v2, 4, v7")
    a(f"s_lshl_b32 s58, s{S_QQ}, 20")
    a(f"s_lshl_b32 s59, s{S_WAVE}, 17")
    a("s_add_u32 s58, s58, s59")
    a(f"s_lshl_b32 s59, s{S_H}, 8")
    a("s_add_u32 s58, s58, s59")
    srd(a, SRD_C, P_WUV, 4194304)
    for i in range(4):
        a(f"buffer_load_dwordx4 {vr(WUV_R+4*i)}, v7, {sr(SRD_C)}, s58 offen{NT(OPT['nt_w'])}")
        if i < 3:
            a("s_add_u32 s58, s58, 8192")
    a("v_lshlrev_b32 v8, 12, v3")
    a("v_lshl_add_u32 v8, v2, 4, v8")
    a(f"s_lshl_b32 s59, s{S_H}, 17")
    a(f"s_lshl_b32 s60, s{S_WAVE}, 14")
    a("s_add_u32 s59, s59, s60")
    srd(a, SRD_D, P_WO, 4194304)
    for i in range(4):
        for ct in range(4):
            a(f"buffer_load_dwordx4 {vr(WO_R+16*i+4*ct)}, v8, {sr(SRD_D)}, s59 offen offset:{1024*i+256*ct}{NT(OPT['nt_wo'])}")
    stamp(a, 9)


def wgt_down(a):
    done = f"Ldn_done{uid()}"
    a(f"s_cmp_ge_u32 s{S_IDX}, 112")
    a(f"s_cbranch_scc1 {done}")
    a("v_bfe_u32 v5, v1, 3, 1")
    a("v_mul_u32_u24 v5, 28672, v5")
    a("v_lshl_add_u32 v5, v3, 4, v5")
    a(f"s_lshl_b32 s54, s{S_IDX}, 4")
    a("s_lshl_b32 s55, s63, 3")
    a("s_add_u32 s54, s54, s55")
    a("s_lshl_b32 s54, s54, 3")
    srd(a, SRD_A, P_WS, 4 * 2 * 2 * 1792 * 8, WS_GU)
    G = 64
    sp = Spin(a)
    sp.begin()
    a("s_mov_b32 s55, s54")
    for rq in range(4):
        for mat in range(2):
            a(f"buffer_load_dwordx4 {vr(G+8*rq+4*mat)}, v5, {sr(SRD_A)}, s55 offen sc1")
            if not (rq == 3 and mat == 1):
                a("s_add_u32 s55, s55, %d" % (1792 * 8 if mat == 0 else 3 * 1792 * 8))
    a("s_waitcnt vmcnt(0)")
    tag_check(a, [G + 1 + 2 * k for k in range(16)], 10, 11)
    sp.end()
    for k in (0, 2, 4, 6):
        a(f"v_add_f32 v{G+k}, v{G+k}, v{G+8+k}")
        a(f"v_add_f32 v{G+16+k}, v{G+16+k}, v{G+24+k}")
    for k in (0, 2, 4, 6):
        a(f"v_add_f32 v{G+k}, v{G+k}, v{G+16+k}")
    DUP = 32
    for i in range(2):
        a(f"v_max_f32 v{DUP+i}, 0, v{G+2*i}")
        a(f"v_mul_f32 v{DUP+i}, v{DUP+i}, v{G+4+2*i}")
        a(f"v_cvt_pk_bf16_f32 v{DUP+i}, v{DUP+i}, v{DUP+i}")
    AF = 96
    afrags(a, DUP, 2, MASK, AF)
    ACC = 52
    for i in range(2):
        c = "0" if i == 0 else vr(ACC)
        a(f"v_mfma_f32_16x16x32_bf16 {vr(ACC)}, {vr(AF+4*i)}, {vr(WD_R+4*i)}, {c}")
    a(f"s_lshl_b32 s59, s{S_WAVE}, 10")
    a("v_add_u32 v8, s59, v4")
    a(f"ds_write_b128 v8, {vr(ACC)} offset:{L_REDD}")
    a("s_waitcnt lgkmcnt(0)")
    a("s_barrier")
    a(f"s_cmp_ge_u32 s{S_WAVE}, 4")
    a(f"s_cbranch_scc1 {done}")
    reduceN(a, 8, L_REDD, ACC, 64, n=2, stride=4096)
    srd(a, SRD_E, P_WS, 32 * 112 * 256, WS_YP)
    a("v_lshrrev_b32 v9, 5, v1")
    a(f"v_mul_u32_u24 v9, {16*112*256}, v9")
    a("v_lshrrev_b32 v10, 2, v2")
    a(f"v_mul_u32_u24 v10, {112*256}, v10")
    a("v_add_u32 v9, v9, v10")
    a("v_and_b32 v10, 3, v2")
    a("v_lshl_add_u32 v9, v10, 6, v9")
    a("v_and_b32 v10, 1, v3")
    a("v_lshl_add_u32 v9, v10, 5, v9")
    a(f"s_lshl_b32 s59, s{S_IDX}, 8")
    a(f"s_mul_i32 s57, s62, {4*112*256}")
    a("s_add_u32 s59, s59, s57")
    tagged_store(a, ACC, 64, 9, SRD_E, 59)
    a.label(done)
    stamp(a, 10)


def wgt_post(a):
    if OPT.get("dbg_wait"):
        a("s_waitcnt vmcnt(0)")
    a("v_lshlrev_b32 v7, 8, v1")
    a("s_lshl_b32 s56, s63, 14")
    a(f"s_lshl_b32 s57, s{S_H}, 3")
    a("s_add_u32 s56, s56, s57")
    a("v_lshlrev_b32 v8, 10, v3")
    a("v_lshl_add_u32 v8, v2, 4, v8")
    a(f"s_lshl_b32 s57, s{S_H}, 2")
    a(f"s_add_u32 s57, s57, s{S_QQ}")
    a("s_lshl_b32 s57, s57, 15")
    a("s_lshl_b32 s58, s63, 14")
    a("s_add_u32 s57, s57, s58")
    a("s_lshl_b32 s58, s62, 12")
    a("s_add_u32 s57, s57, s58")
    srd(a, SRD_A, P_WS, 32768, WS_STAT)
    srd(a, SRD_B, P_WS, 4194304, WS_OP)
    a("s_lshl_b32 s60, s62, 6")
    a("v_lshlrev_b32 v12, 4, v3")
    a("v_add_u32 v12, s60, v12")
    a(f"s_lshl_b32 s60, s{S_WAVE}, 10")
    a("v_add_u32 v13, s60, v4")
    a("v_bfe_u32 v14, v1, 3, 1")
    a("v_lshlrev_b32 v15, 9, v14")
    a("v_and_b32 v16, 1, v3")
    a("v_lshl_add_u32 v15, v16, 8, v15")
    a("v_lshrrev_b32 v16, 1, v3")
    a("v_lshl_add_u32 v15, v16, 4, v15")
    a(f"s_lshl_b32 s60, s{S_WAVE}, 5")
    a("v_add_u32 v15, s60, v15")
    a("v_lshl_add_u32 v16, v14, 12, v15")
    a("v_cmp_eq_u32 s[58:59], s63, v14")
    a("v_lshlrev_b32 v5, 6, v1")
    poll_flags(a, 5, 20, nloads=2, second_off=64 * 64)
    stamp(a, 11)
    sp = Spin(a)
    sp.begin()
    a(f"buffer_load_dwordx2 v[18:19], v7, {sr(SRD_A)}, s56 offen sc1")
    a("s_waitcnt vmcnt(0)")
    a("v_max_u32 v20, v18, v19")
    a("v_cmp_eq_u32 vcc, -1, v20")
    sp.end()
    stamp(a, 12)
    OPR = 64
    for i in range(4):
        a(f"buffer_load_dwordx4 {vr(OPR+4*i)}, v8, {sr(SRD_B)}, s57 offen offset:{256*i} sc1")
    a("v_mov_b32 v20, v18")
    allreduce(a, "v_max_f32", [20], [21])
    a("v_sub_f32 v18, v18, v20")
    a("v_exp_f32 v18, v18")
    DUP = 32
    for i in range(4):
        a(f"v_add_u32 v21, {4*i}, v12")
        a(f"ds_bpermute_b32 v{DUP+i}, v21, v18")
    a("v_mul_f32 v19, v19, v18")
    allreduce(a, "v_add_f32", [19], [21])
    a("v_rcp_f32 v19, v19")
    a("s_waitcnt lgkmcnt(0)")
    for i in range(4):
        a(f"v_cndmask_b32 v{DUP+i}, 0, v{DUP+i}, s[58:59]")
    for i in range(4):
        a(f"v_cvt_pk_bf16_f32 v{DUP+i}, v{DUP+i}, v{DUP+i}")
    AF = 80
    afrags(a, DUP, 4, MASK, AF)
    n = uid()
    a(f"s_mov_b32 s{S_SPIN}, {SPIN_MAX}")
    a.label(f"Lopv{n}")
    a("s_waitcnt vmcnt(0)")
    sentinel_check(a, list(range(OPR, OPR + 16)), 20)
    a("s_cmp_eq_u64 vcc, 0")
    a(f"s_cbranch_scc1 Lopd{n}")
    a(f"s_sub_u32 s{S_SPIN}, s{S_SPIN}, 1")
    a(f"s_cmp_eq_u32 s{S_SPIN}, 0")
    a(f"s_cbranch_scc1 Lopd{n}")
    for i in range(4):
        a(f"buffer_load_dwordx4 {vr(OPR+4*i)}, v8, {sr(SRD_B)}, s57 offen offset:{256*i} sc1")
    a(f"s_branch Lopv{n}")
    a.label(f"Lopd{n}")
    stamp(a, 13)
    ACC = 52
    for i in range(4):
        c = "0" if i == 0 else vr(ACC)
        a(f"v_mfma_f32_16x16x32_bf16 {vr(ACC)}, {vr(AF+4*i)}, {vr(OPR+4*i)}, {c}")
    for r in range(4):
        a(f"v_mul_f32 v{ACC+r}, v{ACC+r}, v19")
    a(f"ds_write_b128 v13, {vr(ACC)} offset:{L_R1}")
    a("s_waitcnt lgkmcnt(0)")
    a("s_barrier")
    reduceN(a, 16, L_R1, DUP, 96, n=4)
    for r in range(4):
        a(f"v_cvt_pk_bf16_f32 v{DUP+r}, v{DUP+r}, v{DUP+r}")
    afrags(a, DUP, 4, MASK, AF)
    for i in range(4):
        c = "0" if i == 0 else vr(ACC)
        a(f"v_mfma_f32_16x16x32_bf16 {vr(ACC)}, {vr(AF+4*i)}, {vr(WUV_R+4*i)}, {c}")
    a(f"ds_write_b128 v13, {vr(ACC)} offset:{L_R2}")
    a("s_waitcnt lgkmcnt(0)")
    a("s_barrier")
    reduceN(a, 15, L_R2, DUP, 96, n=8)
    for r in range(4):
        a(f"v_cvt_pk_bf16_f32 v{DUP+r}, v{DUP+r}, v{DUP+r}")
    afrags(a, DUP, 4, MASK, AF)
    A3 = 64
    for i in range(4):
        for ct in range(4):
            c = "0" if i == 0 else vr(A3 + 4 * ct)
            a(f"v_mfma_f32_16x16x32_bf16 {vr(A3+4*ct)}, {vr(AF+4*i)}, {vr(WO_R+16*i+4*ct)}, {c}")
    a(f"v_add_u32 v17, {L_R3}, v13")
    for ct in range(4):
        a(f"ds_write_b128 v17, {vr(A3+4*ct)} offset:{8192*ct}")
    srd(a, SRD_E, P_WS, 32 * 16384, WS_SP)
    a("v_lshrrev_b32 v9, 5, v1")
    a("v_lshlrev_b32 v9, 18, v9")
    a("v_lshrrev_b32 v10, 2, v2")
    a("v_lshl_add_u32 v9, v10, 14, v9")
    a("v_and_b32 v10, 3, v2")
    a("v_lshl_add_u32 v9, v10, 5, v9")
    a("v_and_b32 v10, 1, v3")
    a("v_lshl_add_u32 v9, v10, 4, v9")
    a(f"s_lshl_b32 s59, s{S_IDX}, 7")
    a("s_lshl_b32 s57, s62, 16")
    a("s_add_u32 s59, s59, s57")
    a("s_lshl_b32 s60, s62, 13")
    a(f"s_add_u32 s60, s60, {L_R3}")
    a("v_add_u32 v17, s60, v4")
    a("s_waitcnt lgkmcnt(0)")
    a("s_barrier")
    lab = f"Lpost_done{uid()}"
    a(f"s_cmp_ge_u32 s{S_WAVE}, 4")
    a(f"s_cbranch_scc1 {lab}")
    reduceN(a, 17, 0, ACC, 96, n=8)
    a(f"buffer_store_dwordx4 {vr(ACC)}, v9, {sr(SRD_E)}, s59 offen sc1")
    a.label(lab)
    stamp(a, 14)


LDS_QA = 131072
L_SX = 0
L_PB = 16384
L_MX = 24576
L_LS = 25600
L_OT = 32768
L_FIN = 73728


def att(a):
    S_B = 52
    idx = S_IDX
    a(f"s_lshr_b32 s{S_B}, s{idx}, 6")
    a(f"s_lshr_b32 s54, s{S_WAVE}, 1")
    a(f"s_and_b32 s55, s{S_WAVE}, 1")
    a("v_and_b32 v6, 31, v1")
    a("v_lshrrev_b32 v7, 5, v1")
    a("v_lshlrev_b32 v8, 2, v7")
    a("v_xor_b32 v8, v8, v6")
    a("v_lshlrev_b32 v8, 4, v8")
    a("v_lshl_add_u32 v8, v7, 10, v8")
    a("s_lshl_b32 s56, s54, 15")
    a("s_lshl_b32 s57, s55, 9")
    a("s_add_u32 s56, s56, s57")
    a("s_lshl_b32 s58, s55, 16")
    a("s_lshl_b32 s59, s54, 14")
    a("s_add_u32 s58, s58, s59")
    a(f"s_lshl_b32 s59, s{idx}, 17")
    a("s_waitcnt lgkmcnt(0)")
    a(f"s_load_dword s{S_EPOCH}, s[{P_WS}:{P_WS+1}], {WS_EPOCH}")
    a(f"s_add_u32 s{SRD_A}, s{P_KV}, s59")
    a(f"s_addc_u32 s{SRD_A+1}, s{P_KV+1}, 0")
    a(f"s_mov_b32 s{SRD_A+2}, 131072")
    a(f"s_mov_b32 s{SRD_A+3}, 0x20000")
    for i in range(16):
        ci = ((i & 1) << 3) | ((i >> 1) & 3)
        a(f"s_add_u32 m0, s58, {1024*i}")
        a(f"v_xor_b32 v5, {ci << 4}, v8")
        a(f"buffer_load_dwordx4 v5, {sr(SRD_A)}, s56 offen{NT(OPT['nt_kv'])} lds")
        if OPT.get("kvwin", 0) and i >= OPT["kvwin"]:
            a(f"s_waitcnt vmcnt({OPT['kvwin']})")
        if i < 15:
            a("s_add_u32 s56, s56, 2048")
    srd(a, SRD_F, P_WS, NFLAG * 64, WS_FLAG)
    nofin = f"Latt_nofin{uid()}"
    a(f"s_cmp_ge_u32 s{idx}, 32")
    a(f"s_cbranch_scc1 {nofin}")
    srd(a, SRD_E, P_WS, 32 * 16384, WS_SP)
    for r in range(4):
        a(f"v_mov_b32 v{56+r}, -1")
    a(f"s_lshl_b32 s56, s{idx}, 14")
    a(f"s_lshl_b32 s57, s{S_WAVE}, 11")
    a("s_add_u32 s56, s56, s57")
    a(f"buffer_store_dwordx4 v[56:59], v4, {sr(SRD_E)}, s56 offen sc1")
    a(f"buffer_store_dwordx4 v[56:59], v4, {sr(SRD_E)}, s56 offen offset:1024 sc1")
    a.label(nofin)
    a("v_and_b32 v8, 3, v1")
    a("v_lshlrev_b32 v8, 2, v8")
    a("v_bfe_u32 v9, v1, 2, 2")
    a("v_or_b32 v8, v8, v9")
    a("v_xor_b32 v8, v8, v7")
    a("v_lshlrev_b32 v8, 4, v8")
    a("v_lshl_add_u32 v9, v6, 10, v8")
    a("s_lshl_b32 s56, s55, 9")
    a(f"s_add_u32 s57, s56, {LDS_QA}")
    a("v_add_u32 v9, s57, v9")
    a("s_lshl_b32 s57, s55, 4")
    a("v_xor_b32 v10, s57, v6")
    a("v_lshl_add_u32 v10, v10, 9, v8")
    a("v_add_u32 v10, s58, v10")
    AK, AQ, PA = 16, 24, 32
    for s in range(8):
        a(f"v_xor_b32 v{AK+s}, {32*s}, v10")
        a(f"v_xor_b32 v{AQ+s}, {32*s}, v9")
    a("v_bfe_u32 v11, v1, 2, 2")
    a("v_lshl_add_u32 v12, v7, 2, v11")
    a("v_lshlrev_b32 v12, 9, v12")
    a("v_and_b32 v13, 1, v1")
    a("v_lshl_add_u32 v12, v13, 3, v12")
    a(f"s_lshr_b32 s56, s{S_WAVE}, 2")
    a("s_lshl_b32 s56, s56, 16")
    a(f"s_bfe_u32 s57, s{S_WAVE}, 0x10001")
    a("s_lshl_b32 s57, s57, 8")
    a("s_add_u32 s56, s56, s57")
    a("v_add_u32 v12, s56, v12")
    a("v_bfe_u32 v13, v1, 4, 1")
    a("v_bfe_u32 v14, v1, 1, 1")
    a("v_lshl_add_u32 v13, v13, 1, v14")
    a("v_xor_b32 v13, v13, v7")
    a("s_lshl_b32 s56, s55, 1")
    a("v_xor_b32 v14, s56, v11")
    a("v_lshl_add_u32 v13, v14, 2, v13")
    a(f"v_lshl_add_u32 v{PA}, v13, 4, v12")
    a(f"v_xor_b32 v{PA+1}, 32, v{PA}")
    a(f"v_add_u32 v{PA+1}, 4096, v{PA+1}")
    a(f"v_xor_b32 v{PA+2}, 64, v{PA}")
    a(f"v_xor_b32 v{PA+3}, 64, v{PA+1}")
    a("v_lshlrev_b32 v13, 5, v6")
    a(f"s_lshl_b32 s56, s{S_WAVE}, 2")
    a("v_add_u32 v14, s56, v13")
    a(f"s_lshl_b32 s56, s{S_WAVE}, 11")
    a("v_add_u32 v11, s56, v4")
    a("s_xor_b32 s56, s56, 2048")
    a("v_add_u32 v12, s56, v4")
    a(f"s_lshl_b32 s56, s{S_WAVE}, 10")
    a("v_add_u32 v15, s56, v4")
    a("v_lshlrev_b32 v5, 6, v1")
    stamp(a, 1)
    a("s_waitcnt vmcnt(0) lgkmcnt(0)")
    a(f"s_add_u32 s{S_EPOCH}, s{S_EPOCH}, 1")
    stamp(a, 2)
    KF = 64
    for s in range(16):
        a(f"ds_read_b128 {vr(KF+4*s)}, v{AK+(s&7)} offset:{256*(s>>3)}")
    np_ = f"Latt_np{uid()}"
    a(f"s_cmp_lg_u32 s{S_WAVE}, 0")
    a(f"s_cbranch_scc1 {np_}")
    poll_flags(a, 5, 58, nloads=2, second_off=64 * 64)
    a.label(np_)
    a("s_waitcnt lgkmcnt(0)")
    a("s_barrier")
    stamp(a, 3)
    a(f"s_lshl_b32 s54, s{S_B}, 15")
    a(f"s_add_u32 s{SRD_B}, s{P_WS}, s54")
    a(f"s_addc_u32 s{SRD_B+1}, s{P_WS+1}, 0")
    a(f"s_mov_b32 s{SRD_B+2}, 32768")
    a(f"s_mov_b32 s{SRD_B+3}, 0x20000")
    a(f"s_and_b32 s56, s{S_WAVE}, 3")
    a("s_lshl_b32 s56, s56, 4")
    a(f"s_lshl_b32 s57, s{S_WAVE}, 12")
    a("s_or_b32 s56, s56, s57")
    a(f"s_add_u32 s57, s57, {LDS_QA}")
    for k in range(4):
        a(f"s_add_u32 m0, s57, {1024*k}")
        a(f"s_xor_b32 s59, s56, {(k << 10) | (k << 6)}")
        a("v_xor_b32 v5, s59, v4")
        a(f"buffer_load_dwordx4 v5, {sr(SRD_B)}, 0 offen sc1 lds")
    VF = 128
    for sg_ in range(8):
        for T in range(2):
            for u in range(2):
                reg = VF + (sg_ * 2 + T) * 4 + 2 * u
                a(f"ds_read_b64_tr_b16 v[{reg}:{reg+1}], v{PA+T*2+u} offset:{8192*sg_}")
    a("s_waitcnt vmcnt(0) lgkmcnt(0)")
    a("s_barrier")
    stamp(a, 4)
    QF = 192
    ACC = 36
    for s in range(16):
        a(f"ds_read_b128 {vr(QF+4*s)}, v{AQ+(s&7)} offset:{256*(s>>3)}")
    for s in range(16):
        a(f"s_waitcnt lgkmcnt({15-s})")
        c = "0" if s == 0 else vr(ACC, 16)
        a(f"v_mfma_f32_32x32x16_bf16 {vr(ACC,16)}, {vr(KF+4*s)}, {vr(QF+4*s)}, {c}")
    stamp(a, 5)
    a(f"ds_write_b128 v11, {vr(ACC+8)} offset:{L_SX}")
    a(f"ds_write_b128 v11, {vr(ACC+12)} offset:{L_SX+1024}")
    a("s_waitcnt lgkmcnt(0)")
    a("s_barrier")
    stamp(a, 12)
    a(f"ds_read_b128 {vr(52)}, v12 offset:{L_SX}")
    a(f"ds_read_b128 {vr(56)}, v12 offset:{L_SX+1024}")
    a("s_waitcnt lgkmcnt(1)")
    for r in range(4):
        a(f"v_add_f32 v{ACC+r}, v{ACC+r}, v{52+r}")
    a("s_waitcnt lgkmcnt(0)")
    for r in range(4, 8):
        a(f"v_add_f32 v{ACC+r}, v{ACC+r}, v{52+r}")
    a(f"v_max3_f32 v52, v{ACC}, v{ACC+1}, v{ACC+2}")
    a(f"v_max3_f32 v53, v{ACC+3}, v{ACC+4}, v{ACC+5}")
    a(f"v_max3_f32 v52, v52, v{ACC+6}, v{ACC+7}")
    a("v_max_f32 v52, v52, v53")
    a("v_mov_b32 v53, v52")
    a("v_permlane32_swap_b32 v52, v53")
    a("v_max_f32 v52, v52, v53")
    a(f"ds_write_b32 v14, v52 offset:{L_MX}")
    a("s_waitcnt lgkmcnt(0)")
    a("s_barrier")
    stamp(a, 13)
    a(f"ds_read_b128 {vr(52)}, v13 offset:{L_MX}")
    a(f"ds_read_b128 {vr(56)}, v13 offset:{L_MX+16}")
    a("s_waitcnt lgkmcnt(0)")
    a("v_max3_f32 v52, v52, v53, v54")
    a("v_max3_f32 v56, v56, v57, v58")
    a("v_max3_f32 v52, v52, v55, v59")
    a("v_max_f32 v60, v52, v56")
    for r in range(8):
        a(f"v_sub_f32 v{ACC+r}, v{ACC+r}, v60")
    for r in range(8):
        a(f"v_exp_f32 v{ACC+r}, v{ACC+r}")
    for k in range(4):
        a(f"v_cvt_pk_bf16_f32 v{52+k}, v{ACC+2*k}, v{ACC+2*k+1}")
    a(f"ds_write_b128 v15, {vr(52)} offset:{L_PB}")
    a(f"v_add_f32 v44, v{ACC}, v{ACC+1}")
    a(f"v_add_f32 v45, v{ACC+2}, v{ACC+3}")
    a(f"v_add_f32 v46, v{ACC+4}, v{ACC+5}")
    a(f"v_add_f32 v47, v{ACC+6}, v{ACC+7}")
    a("v_add_f32 v44, v44, v45")
    a("v_add_f32 v46, v46, v47")
    a("v_add_f32 v44, v44, v46")
    a("v_mov_b32 v45, v44")
    a("v_permlane32_swap_b32 v44, v45")
    a("v_add_f32 v44, v44, v45")
    a(f"ds_write_b32 v14, v44 offset:{L_LS}")
    a("s_waitcnt lgkmcnt(0)")
    a("s_barrier")
    stamp(a, 6)
    PF = 192
    for sg_ in range(8):
        a(f"ds_read_b128 {vr(PF+4*sg_)}, v4 offset:{L_PB + 1024*sg_}")
    a(f"ds_read_b128 {vr(36)}, v13 offset:{L_LS}")
    a(f"ds_read_b128 {vr(40)}, v13 offset:{L_LS+16}")
    O = 64
    for sg_ in range(8):
        a(f"s_waitcnt lgkmcnt({9 - sg_})")
        for T in range(2):
            c = "0" if sg_ == 0 else vr(O + 16 * T, 16)
            a(f"v_mfma_f32_32x32x16_bf16 {vr(O+16*T,16)}, {vr(VF+(sg_*2+T)*4)}, {vr(PF+4*sg_)}, {c}")
    srd(a, SRD_C, P_WS, 4194304, WS_OP)
    srd(a, SRD_D, P_WS, 32768, WS_STAT)
    a("s_waitcnt lgkmcnt(0)")
    a("v_add_f32 v36, v36, v37")
    a("v_add_f32 v38, v38, v39")
    a("v_add_f32 v40, v40, v41")
    a("v_add_f32 v42, v42, v43")
    a("v_add_f32 v36, v36, v38")
    a("v_add_f32 v40, v40, v42")
    a("v_add_f32 v61, v36, v40")
    a(f"s_mul_i32 s56, s{S_WAVE}, 4608")
    a(f"s_add_u32 s56, s56, {L_OT}")
    a("v_mul_u32_u24 v16, 144, v6")
    a("v_lshl_add_u32 v16, v7, 3, v16")
    a("v_add_u32 v16, s56, v16")
    a("v_lshrrev_b32 v17, 3, v1")
    a("v_mul_u32_u24 v18, 144, v17")
    a("v_and_b32 v19, 7, v1")
    a("v_lshl_add_u32 v18, v19, 4, v18")
    a("v_add_u32 v18, s56, v18")
    a("v_lshlrev_b32 v17, 17, v17")
    a("v_lshl_add_u32 v17, v19, 4, v17")
    a(f"s_lshr_b32 s56, s{S_WAVE}, 1")
    a("s_lshl_b32 s56, s56, 15")
    a("s_lshl_b32 s57, s55, 7")
    a("s_add_u32 s56, s56, s57")
    a(f"s_lshl_b32 s57, s{idx}, 8")
    a("s_add_u32 s56, s56, s57")
    ns = f"Latt_ns{uid()}"
    a(f"s_cmp_lg_u32 s{S_WAVE}, 0")
    a(f"s_cbranch_scc1 {ns}")
    a("v_lshlrev_b32 v19, 3, v6")
    a("s_mov_b32 exec_hi, 0")
    a(f"buffer_store_dwordx2 v[60:61], v19, {sr(SRD_D)}, s57 offen sc1")
    a("s_mov_b64 exec, -1")
    a.label(ns)
    stamp(a, 7)
    for T in range(2):
        for g in range(4):
            r0 = O + 16 * T + 4 * g
            a(f"v_cvt_pk_bf16_f32 v{r0}, v{r0}, v{r0+1}")
            a(f"v_cvt_pk_bf16_f32 v{r0+1}, v{r0+2}, v{r0+3}")
            a(f"ds_write_b64 v16, v[{r0}:{r0+1}] offset:{64*T+16*g}")
    a("s_waitcnt lgkmcnt(0)")
    for k in range(4):
        a(f"ds_read_b128 {vr(96+4*k)}, v18 offset:{8*144*k}")
    for k in range(4):
        a(f"s_waitcnt lgkmcnt({3-k})")
        a(f"buffer_store_dwordx4 {vr(96+4*k)}, v17, {sr(SRD_C)}, s56 offen sc1")
        if k < 3:
            a("s_add_u32 s56, s56, 1048576")
    stamp(a, 8)


def final(a):
    idx = S_IDX
    a("v_lshrrev_b32 v7, 4, v1")
    a("v_lshlrev_b32 v8, 8, v7")
    a("v_lshl_add_u32 v8, v2, 4, v8")
    a(f"s_mul_i32 s53, s{idx}, {112*256}")
    a(f"s_mul_i32 s54, s{S_WAVE}, {14*256}")
    a("s_add_u32 s53, s53, s54")
    a(f"s_lshl_b32 s56, s{idx}, 14")
    a(f"s_lshl_b32 s57, s{S_WAVE}, 11")
    a("s_add_u32 s56, s56, s57")
    srd(a, SRD_A, P_WS, 32 * 16384, WS_SP)
    srd(a, SRD_B, P_WS, 32 * 112 * 256, WS_YP)
    srd(a, SRD_C, P_X, 2048)
    a("v_and_b32 v26, 7, v1")
    a("v_lshlrev_b32 v27, 1, v1")
    a(f"s_lshl_b32 s55, s{idx}, 6")
    a(f"buffer_load_ushort v24, v27, {sr(SRD_C)}, s55 offen")
    YR = 40
    sp = Spin(a)
    sp.begin()
    for k in range(3):
        a(f"buffer_load_dwordx4 {vr(YR+4*k)}, v4, {sr(SRD_B)}, s53 offen offset:{1024*k} sc1")
    a(f"v_mov_b32 v{YR+12}, 0")
    a(f"v_mov_b32 v{YR+13}, s{S_EPOCH}")
    a(f"v_mov_b32 v{YR+14}, 0")
    a(f"v_mov_b32 v{YR+15}, s{S_EPOCH}")
    a("s_mov_b32 exec_hi, 0")
    a(f"buffer_load_dwordx4 {vr(YR+12)}, v4, {sr(SRD_B)}, s53 offen offset:3072 sc1")
    a("s_mov_b64 exec, -1")
    a("s_waitcnt vmcnt(0)")
    tag_check(a, [YR + 1 + 2 * k for k in range(8)], 28, 29)
    sp.end()
    a(f"v_add_f32 v16, v{YR}, v{YR+4}")
    a(f"v_add_f32 v17, v{YR+2}, v{YR+6}")
    a(f"v_add_f32 v18, v{YR+8}, v{YR+12}")
    a(f"v_add_f32 v19, v{YR+10}, v{YR+14}")
    a("v_add_f32 v16, v16, v18")
    a("v_add_f32 v17, v17, v19")
    for sw in (16, 32):
        a("v_mov_b32 v18, v16")
        a("v_mov_b32 v19, v17")
        a(f"v_permlane{sw}_swap_b32 v16, v18")
        a(f"v_permlane{sw}_swap_b32 v17, v19")
        a("v_add_f32 v16, v16, v18")
        a("v_add_f32 v17, v17, v19")
    a(f"s_lshl_b32 s57, s{S_WAVE}, 8")
    a(f"s_add_u32 s57, s57, {L_FIN + 128}")
    a("v_lshl_add_u32 v25, v2, 3, s57")
    a("s_mov_b64 exec, 0xffff")
    a("ds_write_b64 v25, v[16:17]")
    a("s_mov_b64 exec, -1")
    stamp(a, 9)
    sp = Spin(a)
    sp.begin()
    a(f"buffer_load_dwordx4 v[8:11], v4, {sr(SRD_A)}, s56 offen sc1")
    a(f"buffer_load_dwordx4 v[12:15], v4, {sr(SRD_A)}, s56 offen offset:1024 sc1")
    a("s_waitcnt vmcnt(0)")
    sentinel_check(a, list(range(8, 16)), 28)
    sp.end()
    stamp(a, 10)
    for r in range(4):
        a(f"v_add_f32 v{8+r}, v{8+r}, v{12+r}")
    regs = [8, 9, 10, 11]
    tm = [32 + k for k in range(4)]
    for r in regs:
        a(f"v_add_f32_dpp v{r}, v{r}, v{r} row_ror:8 row_mask:0xf bank_mask:0xf")
    for sw in (16, 32):
        for r, t in zip(regs, tm):
            a(f"v_mov_b32 v{t}, v{r}")
        for r, t in zip(regs, tm):
            a(f"v_permlane{sw}_swap_b32 v{r}, v{t}")
        for r, t in zip(regs, tm):
            a(f"v_add_f32 v{r}, v{r}, v{t}")
    a(f"s_lshl_b32 s56, s{S_WAVE}, 8")
    a(f"s_add_u32 s56, s56, {L_FIN}")
    a("v_lshl_add_u32 v25, v26, 4, s56")
    a("s_mov_b64 exec, 0xff")
    a("ds_write_b128 v25, v[8:11]")
    a("s_mov_b64 exec, -1")
    a("s_waitcnt lgkmcnt(0)")
    a("s_barrier")
    lab = f"Lfin_done{uid()}"
    a(f"s_cmp_lg_u32 s{S_WAVE}, 0")
    a(f"s_cbranch_scc1 {lab}")
    a("v_lshlrev_b32 v25, 2, v1")
    a(f"v_add_u32 v25, {L_FIN}, v25")
    for k in range(8):
        a(f"ds_read_b32 v{8+k}, v25 offset:{256*k}")
    srd(a, SRD_D, P_OUT, 2048)
    a("s_waitcnt lgkmcnt(0)")
    a("v_add_f32 v8, v8, v9")
    a("v_add_f32 v10, v10, v11")
    a("v_add_f32 v12, v12, v13")
    a("v_add_f32 v14, v14, v15")
    a("v_add_f32 v8, v8, v10")
    a("v_add_f32 v12, v12, v14")
    a("v_add_f32 v8, v8, v12")
    a("v_mov_b32 v9, v8")
    a("v_permlane32_swap_b32 v8, v9")
    a(f"v_mul_f32 v10, {f2u(-1.4426950408889634)}, v9")
    a("v_exp_f32 v10, v10")
    a("v_add_f32 v10, 1.0, v10")
    a("v_rcp_f32 v10, v10")
    a("v_mul_f32 v9, v9, v10")
    a("v_lshlrev_b32 v24, 16, v24")
    a("v_fma_f32 v8, v8, v9, v24")
    a("v_cvt_pk_bf16_f32 v8, v8, v8")
    a("s_mov_b32 exec_hi, 0")
    a(f"buffer_store_short v8, v27, {sr(SRD_D)}, s55 offen")
    a("s_mov_b64 exec, -1")
    a(f"s_cmp_lg_u32 s{idx}, 0")
    a(f"s_cbranch_scc1 {lab}")
    srd(a, SRD_E, P_WS, 64, WS_EPOCH)
    a(f"v_mov_b32 v8, s{S_EPOCH}")
    a("v_mov_b32 v9, 0")
    a("s_mov_b64 exec, 1")
    a(f"buffer_store_dword v8, v9, {sr(SRD_E)}, 0 offen sc1")
    a("s_mov_b64 exec, -1")
    a.label(lab)
    stamp(a, 11)


def body(a):
    stamp_init(a)
    stamp(a, 0)
    a("s_load_dwordx16 s[4:19], s[0:1], 0")
    a("s_load_dwordx8 s[20:27], s[0:1], 64")
    a("s_load_dwordx2 s[28:29], s[0:1], 96")
    a("s_cmp_ge_u32 s2, 256")
    a("s_cbranch_scc1 Lend")
    a("s_and_b32 s54, s2, 7")
    a("s_lshr_b32 s55, s2, 4")
    a("s_lshl_b32 s55, s55, 3")
    a(f"s_or_b32 s{S_IDX}, s54, s55")
    a("v_lshrrev_b32 v2, 6, v0")
    a("v_and_b32 v1, 63, v0")
    a(f"v_readfirstlane_b32 s{S_WAVE}, v2")
    a("v_and_b32 v2, 15, v1")
    a("v_lshrrev_b32 v3, 4, v1")
    a("v_lshlrev_b32 v4, 4, v1")
    a("s_bitcmp1_b32 s2, 3")
    a("s_cbranch_scc1 Latt")
    a(f"s_and_b32 s{S_H}, s{S_IDX}, 7")
    a(f"s_lshr_b32 s54, s{S_IDX}, 5")
    a(f"s_lshl_b32 s54, s54, 3")
    a(f"s_add_u32 s{S_H}, s{S_H}, s54")
    a(f"s_lshr_b32 s{S_QQ}, s{S_IDX}, 3")
    a(f"s_and_b32 s{S_QQ}, s{S_QQ}, 3")
    wgt_q(a)
    wgt_gu(a)
    wgt_down(a)
    wgt_post(a)
    stamp_flush(a)
    a("s_endpgm")
    a.label("Latt")
    att(a)
    a(f"s_cmp_ge_u32 s{S_IDX}, 32")
    a("s_cbranch_scc1 Latt_end")
    final(a)
    a.label("Latt_end")
    stamp_flush(a)
    a.label("Lend")


def main(out):
    a = Asm()
    name = NAME + "_kernel"
    a.raw("; @launch grid=(256,1,1) block=(512,1,1) lds=163840")
    a.raw('.amdgcn_target "amdgcn-amd-amdhsa--gfx950"')
    a.raw(".text")
    a.raw(f".globl {name}")
    a.raw(".p2align 8")
    a.raw(f".type {name},@function")
    a.raw(f"{name}:")
    body(a)
    a("s_endpgm")
    a.raw('.section .rodata,"a"')
    a.raw(".p2align 6")
    a.raw(f""".amdhsa_kernel {name}
  .amdhsa_next_free_vgpr 256
  .amdhsa_next_free_sgpr 102
  .amdhsa_accum_offset 256
  .amdhsa_group_segment_fixed_size 0
  .amdhsa_kernarg_size 104
  .amdhsa_user_sgpr_count 2
  .amdhsa_user_sgpr_kernarg_segment_ptr 1
  .amdhsa_system_sgpr_workgroup_id_x 1
.end_amdhsa_kernel""")
    open(out, "w").write(a.text())
    print("wrote", out, "nops inserted:", a.nops_inserted)


if __name__ == "__main__":
    out = sys.argv[1] if len(sys.argv) > 1 else "p2.s"
    for kv in sys.argv[2:]:
        k, v = kv.split("=")
        OPT[k] = int(v)
    main(out)
```

```python
import sys, struct
from asmlib import Asm

NAME = "recurrent_scan__compressed_kv_cla__glu_gated_reglu__decode"

WS_QA = 0x000000
WS_GU = 0x600000
WS_STAT = 0x030000
WS_EPOCH = 0x038000
WS_SP = 0x040000
WS_YP = 0x680000
WS_ST = 0x140000
WS_FLAG = 0x180000
F_Q = 0
F_G = F_Q + 128
F_Y = F_G + 128
NFLAG = F_Y + 512
WS_QP = 0x1A0000
WS_OP = 0x200000

P_X, P_KV, P_WQ, P_WUK, P_WUV, P_WO, P_BX, P_WG = 4, 6, 8, 10, 12, 14, 16, 18
P_WU, P_WD, P_OUT, P_DBG, P_WS = 20, 22, 24, 26, 28
S_EPOCH = 3
S_WAVE = 30
S_IDX = 31
SRD_A, SRD_B, SRD_C, SRD_D, SRD_E = 32, 36, 40, 44, 48
SRD_F = 96
S_H, S_QQ = 52, 53
S_SPIN = 100

QSCALE = (128 ** -0.5) * 1.4426950408889634
SPIN_MAX = 20000

OPT = dict(nt_w=1, nt_kv=1, nt_wo=0, stamps=0, stamp_wave=0, kvwin=0)


def f2u(x):
    return "0x%08x" % struct.unpack("<I", struct.pack("<f", x))[0]


def vr(n, k=4):
    return "v[%d:%d]" % (n, n + k - 1) if k > 1 else "v%d" % n


def sr(n, k=4):
    return "s[%d:%d]" % (n, n + k - 1)


_uid = [0]


def uid():
    _uid[0] += 1
    return _uid[0]


def srd(a, dst, ptr, size, off=0):
    if off:
        a(f"s_add_u32 s{dst}, s{ptr}, {off}")
        a(f"s_addc_u32 s{dst+1}, s{ptr+1}, 0")
    else:
        a(f"s_mov_b32 s{dst}, s{ptr}")
        a(f"s_mov_b32 s{dst+1}, s{ptr+1}")
    a(f"s_mov_b32 s{dst+2}, {size}")
    a(f"s_mov_b32 s{dst+3}, 0x20000")


def allreduce(a, op, regs, tmps):
    for dpp in ["quad_perm:[1,0,3,2]", "quad_perm:[2,3,0,1]", "row_half_mirror", "row_mirror"]:
        for r in regs:
            a(f"{op}_dpp v{r}, v{r}, v{r} {dpp} row_mask:0xf bank_mask:0xf")
    for sw in (16, 32):
        for r, t in zip(regs, tmps):
            a(f"v_mov_b32 v{t}, v{r}")
        for r, t in zip(regs, tmps):
            a(f"v_permlane{sw}_swap_b32 v{r}, v{t}")
        for r, t in zip(regs, tmps):
            a(f"{op} v{r}, v{r}, v{t}")


def make_masks(a, m0, t0, t1):
    a(f"v_and_b32 v{t0}, 1, v1")
    a(f"v_cmp_eq_u32 vcc, 1, v{t0}")
    a(f"v_mov_b32 v{t0}, 0xffff")
    a(f"v_mov_b32 v{t1}, 0xffff0000")
    a(f"v_cndmask_b32 v{t0}, v{t0}, v{t1}, vcc")
    a(f"v_bfe_u32 v{t1}, v1, 1, 2")
    for k in range(4):
        a(f"v_cmp_eq_u32 vcc, {k}, v{t1}")
        a(f"v_cndmask_b32 v{m0+k}, 0, v{t0}, vcc")


def ln_stats(a, x0, x1, u0, mean, rstd, t):
    for b, x in enumerate((x0, x1)):
        for k in range(4):
            a(f"v_lshlrev_b32 v{u0+8*b+2*k}, 16, v{x+k}")
            a(f"v_and_b32 v{u0+8*b+2*k+1}, 0xffff0000, v{x+k}")
    s0, s1, q0, q1, ta, tb = t, t + 1, t + 2, t + 3, t + 4, t + 5
    for k in range(1, 8):
        for b, s in enumerate((s0, s1)):
            u = u0 + 8 * b
            if k == 1:
                a(f"v_add_f32 v{s}, v{u}, v{u+1}")
            else:
                a(f"v_add_f32 v{s}, v{s}, v{u+k}")
    allreduce(a, "v_add_f32", [s0, s1], [ta, tb])
    a(f"v_mul_f32 v{s0}, {f2u(1.0/512)}, v{s0}")
    a(f"v_mul_f32 v{s1}, {f2u(1.0/512)}, v{s1}")
    for k in range(8):
        for b, s in enumerate((s0, s1)):
            u = u0 + 8 * b
            a(f"v_sub_f32 v{u+k}, v{u+k}, v{s}")
    for k in range(8):
        for b, q in enumerate((q0, q1)):
            u = u0 + 8 * b
            if k == 0:
                a(f"v_mul_f32 v{q}, v{u}, v{u}")
            else:
                a(f"v_fmac_f32 v{q}, v{u+k}, v{u+k}")
    allreduce(a, "v_add_f32", [q0, q1], [ta, tb])
    a(f"v_mov_b32 v{ta}, {f2u(1e-5)}")
    a(f"v_mov_b32 v{tb}, {f2u(1.0/512)}")
    a(f"v_fma_f32 v{q0}, v{q0}, v{tb}, v{ta}")
    a(f"v_fma_f32 v{q1}, v{q1}, v{tb}, v{ta}")
    a(f"v_rsq_f32 v{q0}, v{q0}")
    a(f"v_rsq_f32 v{q1}, v{q1}")
    a(f"v_and_b32 v{ta}, 8, v1")
    a(f"v_cmp_ne_u32 vcc, 0, v{ta}")
    a(f"v_cndmask_b32 v{mean}, v{s0}, v{s1}, vcc")
    a(f"v_cndmask_b32 v{rstd}, v{q0}, v{q1}, vcc")


def norm_dup(a, src, n, dst, mean, rstd):
    for k in range(n // 2):
        a(f"v_lshlrev_b32 v{dst+2*k}, 16, v{src+k}")
        a(f"v_and_b32 v{dst+2*k+1}, 0xffff0000, v{src+k}")
    for k in range(n):
        a(f"v_sub_f32 v{dst+k}, v{dst+k}, v{mean}")
    for k in range(n):
        a(f"v_mul_f32 v{dst+k}, v{dst+k}, v{rstd}")
    for k in range(n):
        a(f"v_cvt_pk_bf16_f32 v{dst+k}, v{dst+k}, v{dst+k}")


def afrags(a, dup, n, masks, dst):
    for i in range(n):
        for k in range(4):
            a(f"v_and_b32 v{dst+4*i+k}, v{dup+i}, v{masks+k}")


def reduceN(a, rd_addr, base_off, dst, tmp, n=8, stride=1024):
    for k in range(n):
        a(f"ds_read_b128 {vr(tmp+4*k)}, v{rd_addr} offset:{base_off + k*stride}")
    cur = [tmp + 4 * k for k in range(n)]
    left = n
    first = True
    while len(cur) > 1:
        nxt = []
        for p in range(0, len(cur), 2):
            if first:
                a(f"s_waitcnt lgkmcnt({n - p - 2})")
            for r in range(4):
                d = dst + r if len(cur) == 2 else cur[p] + r
                a(f"v_add_f32 v{d}, v{cur[p]+r}, v{cur[p+1]+r}")
            nxt.append(cur[p])
        cur = nxt
        first = False


def NT(flag):
    return " nt" if flag else ""


NST = 16


def stamp(a, k):
    if not OPT["stamps"]:
        return
    a(f"s_memrealtime s[{64+2*k}:{65+2*k}]")


def stamp_init(a):
    if not OPT["stamps"]:
        return
    for k in range(NST):
        a(f"s_mov_b64 s[{64+2*k}:{65+2*k}], 0")


def stamp_flush(a):
    if not OPT["stamps"]:
        return
    if OPT.get("dbgout") is not None and OPT.get("dbgout") >= 0:
        lab = f"Lst{uid()}"
        a(f"s_cmp_lg_u32 s{S_WAVE}, {OPT['stamp_wave']}")
        a(f"s_cbranch_scc1 {lab}")
        a(f"s_cmp_lg_u32 s2, {OPT['dbgout']}")
        a(f"s_cbranch_scc1 {lab}")
        a("s_waitcnt vmcnt(0) lgkmcnt(0)")
        a(f"s_memrealtime s[{64+2*(NST-1)}:{65+2*(NST-1)}]")
        a("s_mov_b64 exec, 1")
        a("v_mov_b32 v0, 0")
        a("s_waitcnt lgkmcnt(0)")
        for k in range(NST):
            a(f"s_sub_u32 s54, s{64+2*k}, s64")
            a(f"s_cmp_eq_u32 s{64+2*k}, 0")
            a("s_cselect_b32 s54, 0, s54")
            a("v_mov_b32 v2, s54")
            a(f"global_store_dword v0, v2, s[{P_DBG}:{P_DBG+1}] offset:{4*k}")
        a("s_mov_b64 exec, -1")
        a.label(lab)
        return
    lab = f"Lst{uid()}"
    a(f"s_cmp_lg_u32 s{S_WAVE}, {OPT['stamp_wave']}")
    a(f"s_cbranch_scc1 {lab}")
    a("s_waitcnt vmcnt(0) lgkmcnt(0)")
    a(f"s_memrealtime s[{64+2*(NST-1)}:{65+2*(NST-1)}]")
    a(f"s_lshl_b32 s54, s2, 7")
    a(f"s_add_u32 s54, s54, {WS_ST}")
    a(f"s_add_u32 s56, s{P_WS}, s54")
    a(f"s_addc_u32 s57, s{P_WS+1}, 0")
    a("s_mov_b64 exec, 1")
    a("v_mov_b32 v0, 0")
    a("s_waitcnt lgkmcnt(0)")
    for k in range(NST):
        a(f"v_mov_b32 v2, s{64+2*k}")
        a(f"v_mov_b32 v3, s{65+2*k}")
        a(f"global_store_dwordx2 v0, v[2:3], s[56:57] offset:{8*k}")
    a("s_mov_b64 exec, -1")
    a.label(lab)


class Spin:
    def __init__(self, a):
        self.a = a
        self.n = uid()

    def begin(self):
        self.a(f"s_mov_b32 s{S_SPIN}, {SPIN_MAX}")
        self.a.label(f"Lspin{self.n}")

    def end(self):
        a = self.a
        a("s_cmp_eq_u64 vcc, 0")
        a(f"s_cbranch_scc1 Lspind{self.n}")
        a(f"s_sub_u32 s{S_SPIN}, s{S_SPIN}, 1")
        a(f"s_cmp_lg_u32 s{S_SPIN}, 0")
        a(f"s_cbranch_scc1 Lspin{self.n}")
        a.label(f"Lspind{self.n}")
        a("s_nop 0")


def poll_flags(a, voff, tmp, nloads=1, second_off=0):
    sp = Spin(a)
    sp.begin()
    a(f"buffer_load_dword v{tmp}, v{voff}, {sr(SRD_F)}, 0 offen sc1")
    if nloads == 2:
        a(f"s_mov_b32 s101, {second_off}")
        a(f"buffer_load_dword v{tmp+1}, v{voff}, {sr(SRD_F)}, s101 offen sc1")
    a("s_waitcnt vmcnt(0)")
    a(f"v_cmp_ne_u32 vcc, s{S_EPOCH}, v{tmp}")
    if nloads == 2:
        a(f"v_cmp_ne_u32 s[60:61], s{S_EPOCH}, v{tmp+1}")
        a("s_or_b64 vcc, vcc, s[60:61]")
    sp.end()


def set_flag(a, soff_sgpr, vtmp):
    a(f"v_mov_b32 v{vtmp}, s{S_EPOCH}")
    a(f"v_mov_b32 v{vtmp+1}, 0")
    a("s_mov_b64 s[60:61], exec")
    a("s_mov_b64 exec, 1")
    a(f"buffer_store_dword v{vtmp}, v{vtmp+1}, {sr(SRD_F)}, s{soff_sgpr} offen sc1")
    a("s_mov_b64 exec, s[60:61]")


def sentinel_check(a, regs, t):
    cur = list(regs)
    first = True
    while len(cur) > 1:
        if len(cur) >= 3:
            x, y, z = cur[:3]
            cur = cur[3:]
            a(f"v_max3_u32 v{t}, v{x}, v{y}, v{z}")
        else:
            x, y = cur[:2]
            cur = cur[2:]
            a(f"v_max_u32 v{t}, v{x}, v{y}")
        cur = [t] + cur
    a(f"v_cmp_eq_u32 vcc, -1, v{cur[0]}")


def tagged_store(a, src, tmp, vaddr, srd_, soff):
    for r in range(4):
        a(f"v_mov_b32 v{tmp+2*r}, v{src+r}")
        a(f"v_mov_b32 v{tmp+2*r+1}, s{S_EPOCH}")
    a(f"buffer_store_dwordx4 {vr(tmp)}, v{vaddr}, {sr(srd_)}, s{soff} offen sc1")
    a(f"buffer_store_dwordx4 {vr(tmp+4)}, v{vaddr}, {sr(srd_)}, s{soff} offen offset:16 sc1")


def tag_check(a, tags, t0, t1):
    a(f"v_xor_b32 v{t0}, s{S_EPOCH}, v{tags[0]}")
    for k in tags[1:]:
        a(f"v_xor_b32 v{t1}, s{S_EPOCH}, v{k}")
        a(f"v_or_b32 v{t0}, v{t0}, v{t1}")
    a(f"v_cmp_ne_u32 vcc, 0, v{t0}")


L_RED0 = 0
L_QB = 8192
L_QG = 9216
L_REDG = 16384
L_REDD = 24576
L_R1 = 32768
L_R2 = 40960
L_WUK = 65536
L_R3 = 98304

MASK = 24
MEAN, RSTD = 30, 31


def wgt_clears(a):
    srd(a, SRD_D, P_WS, 4194304, WS_OP)
    for r in range(4):
        a(f"v_mov_b32 v{56+r}, -1")
    a(f"s_lshl_b32 s56, s{S_H}, 2")
    a(f"s_add_u32 s56, s56, s{S_QQ}")
    a("s_lshl_b32 s56, s56, 15")
    a(f"s_lshl_b32 s57, s{S_WAVE}, 12")
    a("s_add_u32 s56, s56, s57")
    for i in range(4):
        a(f"buffer_store_dwordx4 v[56:59], v4, {sr(SRD_D)}, s56 offen offset:{1024*i} sc1")
    srd(a, SRD_E, P_WS, 32768, WS_STAT)
    a(f"s_lshl_b32 s56, s{S_IDX}, 8")
    a(f"s_lshl_b32 s57, s{S_WAVE}, 5")
    a("s_add_u32 s56, s56, s57")
    a("s_mov_b64 exec, 3")
    a(f"buffer_store_dwordx4 v[56:59], v4, {sr(SRD_E)}, s56 offen sc1")
    a("s_mov_b64 exec, -1")


def wgt_q(a):
    a("v_and_b32 v5, 8, v1")
    a("v_lshlrev_b32 v5, 7, v5")
    a("v_lshl_add_u32 v5, v3, 3, v5")
    a("v_lshlrev_b32 v6, 15, v3")
    a("v_lshl_add_u32 v6, v2, 4, v6")
    a("v_xor_b32 v7, v2, v3")
    a("v_lshlrev_b32 v61, 4, v7")
    a("v_lshl_add_u32 v7, v3, 13, v61")
    a("v_lshl_add_u32 v61, v2, 8, v61")
    a(f"s_lshl_b32 s54, s{S_QQ}, 7")
    a(f"s_lshl_b32 s55, s{S_WAVE}, 4")
    a("s_add_u32 s54, s54, s55")
    a("s_lshl_b32 s55, s54, 1")
    a("s_lshl_b32 s56, s54, 13")
    a(f"s_lshl_b32 s57, s{S_H}, 8")
    a("s_add_u32 s56, s56, s57")
    a("s_mov_b32 s58, s56")
    make_masks(a, MASK, 28, 29)
    a("s_waitcnt lgkmcnt(0)")
    a(f"s_load_dword s{S_EPOCH}, s[{P_WS}:{P_WS+1}], {WS_EPOCH}")
    srd(a, SRD_A, P_X, 2048)
    a(f"buffer_load_dwordx4 v[8:11], v4, {sr(SRD_A)}, 0 offen")
    a(f"buffer_load_dwordx4 v[12:15], v4, {sr(SRD_A)}, 0 offen offset:1024")
    a(f"buffer_load_dwordx2 v[16:17], v5, {sr(SRD_A)}, s55 offen")
    srd(a, SRD_B, P_WQ, 4194304)
    WQ, AF = 64, 96
    for i in range(4):
        a(f"buffer_load_dwordx4 {vr(WQ+4*i)}, v6, {sr(SRD_B)}, s56 offen{NT(OPT['nt_w'])}")
        if i < 3:
            a("s_add_u32 s56, s56, 8192")
    srd(a, SRD_C, P_WUK, 4194304)
    a(f"s_lshl_b32 s59, s{S_WAVE}, 12")
    a(f"s_add_u32 s59, s59, {L_WUK}")
    for i in range(4):
        a(f"s_add_u32 m0, s59, {1024*i}")
        a(f"v_xor_b32 v60, {64*i}, v7")
        a(f"buffer_load_dwordx4 v60, {sr(SRD_C)}, s58 offen{NT(OPT['nt_w'])} lds")
        if i < 3:
            a("s_add_u32 s58, s58, 32768")
    a("v_add_u32 v61, s59, v61")
    a("s_barrier")
    wgt_clears(a)
    srd(a, SRD_F, P_WS, NFLAG * 64, WS_FLAG)
    a("s_waitcnt vmcnt(14)")
    stamp(a, 1)
    ln_stats(a, 8, 12, 32, MEAN, RSTD, 48)
    DUP = 32
    a("s_waitcnt vmcnt(13)")
    norm_dup(a, 16, 4, DUP, MEAN, RSTD)
    afrags(a, DUP, 4, MASK, AF)
    ACC = 52
    for i in range(4):
        a(f"s_waitcnt vmcnt({12-i})")
        c = "0" if i == 0 else vr(ACC)
        a(f"v_mfma_f32_16x16x32_bf16 {vr(ACC)}, {vr(AF+4*i)}, {vr(WQ+4*i)}, {c}")
    stamp(a, 2)
    a(f"s_lshl_b32 s59, s{S_WAVE}, 10")
    a("v_add_u32 v8, s59, v4")
    a(f"ds_write_b128 v8, {vr(ACC)} offset:{L_RED0}")
    srd(a, SRD_B, P_WS, 128 * 2048, WS_QP)
    a("v_lshlrev_b32 v9, 5, v1")
    a(f"s_lshl_b32 s56, s{S_H}, 13")
    a(f"s_lshl_b32 s57, s{S_QQ}, 11")
    a("s_add_u32 s57, s57, s56")
    a("s_waitcnt lgkmcnt(0)")
    a(f"s_add_u32 s{S_EPOCH}, s{S_EPOCH}, 1")
    a("s_barrier")
    stamp(a, 3)
    notw0 = f"Lq_nw0{uid()}"
    others = f"Lq_oth{uid()}"
    a(f"s_cmp_lg_u32 s{S_WAVE}, 0")
    a(f"s_cbranch_scc1 {others}")
    reduceN(a, 4, L_RED0, ACC, 64)
    a(f"v_mov_b32 v64, v{ACC}")
    a(f"v_mov_b32 v65, s{S_EPOCH}")
    a(f"v_mov_b32 v66, v{ACC+1}")
    a(f"v_mov_b32 v67, s{S_EPOCH}")
    a(f"v_mov_b32 v68, v{ACC+2}")
    a(f"v_mov_b32 v69, s{S_EPOCH}")
    a(f"v_mov_b32 v70, v{ACC+3}")
    a(f"v_mov_b32 v71, s{S_EPOCH}")
    a(f"buffer_store_dwordx4 v[64:67], v9, {sr(SRD_B)}, s57 offen sc1")
    a(f"buffer_store_dwordx4 v[68:71], v9, {sr(SRD_B)}, s57 offen offset:16 sc1")
    stamp(a, 4)
    sp = Spin(a)
    sp.begin()
    a("s_mov_b32 s57, s56")
    for k in range(4):
        a(f"buffer_load_dwordx4 {vr(72+8*k)}, v9, {sr(SRD_B)}, s57 offen sc1")
        a(f"buffer_load_dwordx4 {vr(76+8*k)}, v9, {sr(SRD_B)}, s57 offen offset:16 sc1")
        if k < 3:
            a("s_add_u32 s57, s57, 2048")
    a("s_waitcnt vmcnt(0)")
    a(f"v_mov_b32 v10, s{S_EPOCH}")
    tags = [73 + 2 * k for k in range(16)]
    a(f"v_xor_b32 v11, v{tags[0]}, v10")
    for k in range(1, 16):
        a(f"v_xor_b32 v12, v{tags[k]}, v10")
        a("v_or_b32 v11, v11, v12")
    a("v_cmp_ne_u32 vcc, 0, v11")
    sp.end()
    stamp(a, 5)
    for r in range(4):
        a(f"v_add_f32 v{72+2*r}, v{72+2*r}, v{80+2*r}")
        a(f"v_add_f32 v{88+2*r}, v{88+2*r}, v{96+2*r}")
    for r in range(4):
        a(f"v_add_f32 v{72+2*r}, v{72+2*r}, v{88+2*r}")
    a(f"v_cvt_pk_bf16_f32 v{ACC}, v72, v74")
    a(f"v_cvt_pk_bf16_f32 v{ACC+1}, v76, v78")
    a("v_lshrrev_b32 v9, 5, v1")
    a("v_lshlrev_b32 v9, 8, v9")
    a("v_lshl_add_u32 v9, v2, 4, v9")
    a("v_and_b32 v10, 1, v3")
    a("v_lshl_add_u32 v9, v10, 3, v9")
    a(f"ds_write_b64 v9, v[{ACC}:{ACC+1}] offset:{L_QB}")
    a(f"s_branch {notw0}")
    a.label(others)
    a("s_waitcnt vmcnt(0)")
    a.label(notw0)
    WUK = 112
    for s in range(4):
        a(f"v_xor_b32 v60, {64*s}, v61")
        a(f"ds_read_b128 {vr(WUK+4*s)}, v60")
    a("v_and_b32 v10, 1, v1")
    a("v_lshlrev_b32 v10, 8, v10")
    a("v_lshl_add_u32 v10, v3, 4, v10")
    a("s_waitcnt lgkmcnt(0)")
    a("s_barrier")
    stamp(a, 6)
    QF = 64
    for s in range(4):
        a(f"ds_read_b128 {vr(QF+4*s)}, v10 offset:{L_QB + 64*s}")
    ACC2 = 56
    for s in range(4):
        a(f"s_waitcnt lgkmcnt({3-s})")
        c = "0" if s == 0 else vr(ACC2)
        a(f"v_mfma_f32_16x16x32_bf16 {vr(ACC2)}, {vr(WUK+4*s)}, {vr(QF+4*s)}, {c}")
    a(f"s_mov_b32 s59, {f2u(QSCALE)}")
    a(f"s_lshl_b32 s58, s{S_WAVE}, 5")
    a("v_lshlrev_b32 v9, 8, v2")
    a("v_lshl_add_u32 v9, v3, 3, v9")
    a("v_add_u32 v9, s58, v9")
    a("v_cmp_gt_u32 vcc, 2, v2")
    for r in range(4):
        a(f"v_mul_f32 v{ACC2+r}, s59, v{ACC2+r}")
    a(f"v_cvt_pk_bf16_f32 v{ACC2}, v{ACC2}, v{ACC2+1}")
    a(f"v_cvt_pk_bf16_f32 v{ACC2+1}, v{ACC2+2}, v{ACC2+3}")
    a("s_and_saveexec_b64 s[60:61], vcc")
    a(f"ds_write_b64 v9, v[{ACC2}:{ACC2+1}] offset:{L_QG}")
    a("s_mov_b64 exec, s[60:61]")
    a("s_waitcnt lgkmcnt(0)")
    a("s_barrier")
    lab = f"Lq_done{uid()}"
    a(f"s_cmp_lg_u32 s{S_WAVE}, 0")
    a(f"s_cbranch_scc1 {lab}")
    srd(a, SRD_D, P_WS, 65536, WS_QA)
    a(f"ds_read_b128 v[8:11], v4 offset:{L_QG}")
    a("v_lshlrev_b32 v12, 15, v3")
    a("v_lshl_add_u32 v12, v2, 4, v12")
    a(f"s_lshl_b32 s59, s{S_H}, 10")
    a(f"s_lshl_b32 s57, s{S_QQ}, 8")
    a("s_add_u32 s59, s59, s57")
    a("s_mov_b32 exec_hi, 0")
    a("s_waitcnt lgkmcnt(0)")
    a(f"buffer_store_dwordx4 v[8:11], v12, {sr(SRD_D)}, s59 offen sc1")
    a("s_mov_b64 exec, -1")
    a(f"s_lshl_b32 s59, s{S_IDX}, 6")
    a(f"s_add_u32 s59, s59, {F_Q*64}")
    stamp(a, 7)
    a("s_waitcnt vmcnt(0)")
    set_flag(a, 59, 8)
    a.label(lab)
    wgt_gu_issue(a)
    wgt_issue_rest(a)


GU_W = 192


def gu_decode(a):
    S_MAT, S_T, S_RQ = 54, 55, 56
    a(f"s_cmp_ge_u32 s{S_IDX}, 56")
    a(f"s_cselect_b32 s{S_MAT}, 1, 0")
    a(f"s_mul_i32 s57, s{S_MAT}, 56")
    a(f"s_sub_u32 s57, s{S_IDX}, s57")
    a(f"s_lshr_b32 s{S_T}, s57, 2")
    a(f"s_and_b32 s{S_RQ}, s57, 3")


def wgt_gu_issue(a):
    S_MAT, S_T, S_RQ = 54, 55, 56
    gu_decode(a)
    a("v_and_b32 v5, 8, v1")
    a("v_lshlrev_b32 v5, 7, v5")
    a("v_lshl_add_u32 v5, v3, 3, v5")
    a("v_mul_u32_u24 v6, 14336, v3")
    a("v_lshl_add_u32 v6, v2, 4, v6")
    a(f"s_lshl_b32 s57, s{S_RQ}, 7")
    a(f"s_lshl_b32 s58, s{S_WAVE}, 4")
    a("s_add_u32 s57, s57, s58")
    a("s_mul_i32 s58, s57, 3584")
    a(f"s_lshl_b32 s59, s{S_T}, 8")
    a("s_add_u32 s58, s58, s59")
    a("s_lshl_b32 s57, s57, 1")
    a(f"s_cmp_eq_u32 s{S_MAT}, 0")
    a(f"s_cselect_b32 s{SRD_B}, s{P_WG}, s{P_WU}")
    a(f"s_cselect_b32 s{SRD_B+1}, s{P_WG+1}, s{P_WU+1}")
    a(f"s_mov_b32 s{SRD_B+2}, {512*3584}")
    a(f"s_mov_b32 s{SRD_B+3}, 0x20000")
    a(f"buffer_load_dwordx2 v[208:209], v5, {sr(SRD_A)}, s57 offen")
    for i in range(4):
        a(f"buffer_load_dwordx4 {vr(GU_W+4*i)}, v6, {sr(SRD_B)}, s58 offen{NT(OPT['nt_w'])}")
        if i < 3:
            a("s_add_u32 s58, s58, 3584")


def wgt_gu(a):
    S_MAT, S_T, S_RQ = 54, 55, 56
    done = f"Lgu_done{uid()}"
    a(f"s_cmp_ge_u32 s{S_IDX}, 112")
    a(f"s_cbranch_scc1 {done}")
    AF = 96
    a("s_waitcnt vmcnt(26)")
    DUP = 32
    norm_dup(a, 208, 4, DUP, MEAN, RSTD)
    afrags(a, DUP, 4, MASK, AF)
    ACC = 52
    for i in range(4):
        a(f"s_waitcnt vmcnt({25-i})")
        c = "0" if i == 0 else vr(ACC)
        a(f"v_mfma_f32_16x16x32_bf16 {vr(ACC)}, {vr(AF+4*i)}, {vr(GU_W+4*i)}, {c}")
    a(f"s_lshl_b32 s59, s{S_WAVE}, 10")
    a("v_add_u32 v8, s59, v4")
    a(f"ds_write_b128 v8, {vr(ACC)} offset:{L_REDG}")
    a("s_waitcnt lgkmcnt(0)")
    a("s_barrier")
    a(f"s_cmp_lg_u32 s{S_WAVE}, 1")
    a(f"s_cbranch_scc1 {done}")
    gu_decode(a)
    reduceN(a, 4, L_REDG, ACC, 64)
    srd(a, SRD_D, P_WS, 4 * 2 * 2 * 1792 * 8, WS_GU)
    a("v_lshrrev_b32 v9, 5, v1")
    a("v_mul_u32_u24 v9, 28672, v9")
    a("v_lshl_add_u32 v9, v2, 6, v9")
    a("v_and_b32 v10, 1, v3")
    a("v_lshl_add_u32 v9, v10, 5, v9")
    a(f"s_mul_i32 s59, s{S_RQ}, {4*1792*8}")
    a(f"s_mul_i32 s57, s{S_MAT}, {1792*8}")
    a("s_add_u32 s59, s59, s57")
    a(f"s_lshl_b32 s57, s{S_T}, 10")
    a("s_add_u32 s59, s59, s57")
    tagged_store(a, ACC, 64, 9, SRD_D, 59)
    a.label(done)
    stamp(a, 8)


WD_R, WUV_R, WO_R = 224, 232, 128


def wgt_issue_rest(a):
    a(f"s_and_b32 s62, s{S_WAVE}, 3")
    a(f"s_lshr_b32 s63, s{S_WAVE}, 2")
    a("v_lshlrev_b32 v6, 11, v3")
    a("v_lshl_add_u32 v6, v2, 4, v6")
    a(f"s_lshl_b32 s54, s{S_IDX}, 4")
    a("s_lshl_b32 s55, s63, 3")
    a("s_add_u32 s54, s54, s55")
    a("s_lshl_b32 s56, s54, 10")
    a("s_lshl_b32 s57, s62, 8")
    a("s_add_u32 s56, s56, s57")
    srd(a, SRD_B, P_WD, 1792 * 1024)
    for i in range(2):
        a(f"buffer_load_dwordx4 {vr(WD_R+4*i)}, v6, {sr(SRD_B)}, s56 offen offset:{1024*i}{NT(OPT['nt_w'])}")
    a("v_lshlrev_b32 v7, 15, v3")
    a("v_lshl_add_u32 v7, v2, 4, v7")
    a(f"s_lshl_b32 s58, s{S_QQ}, 20")
    a(f"s_lshl_b32 s59, s{S_WAVE}, 17")
    a("s_add_u32 s58, s58, s59")
    a(f"s_lshl_b32 s59, s{S_H}, 8")
    a("s_add_u32 s58, s58, s59")
    srd(a, SRD_C, P_WUV, 4194304)
    for i in range(4):
        a(f"buffer_load_dwordx4 {vr(WUV_R+4*i)}, v7, {sr(SRD_C)}, s58 offen{NT(OPT['nt_w'])}")
        if i < 3:
            a("s_add_u32 s58, s58, 8192")
    a("v_lshlrev_b32 v8, 12, v3")
    a("v_lshl_add_u32 v8, v2, 4, v8")
    a(f"s_lshl_b32 s59, s{S_H}, 17")
    a(f"s_lshl_b32 s60, s{S_WAVE}, 14")
    a("s_add_u32 s59, s59, s60")
    srd(a, SRD_D, P_WO, 4194304)
    for i in range(4):
        for ct in range(4):
            a(f"buffer_load_dwordx4 {vr(WO_R+16*i+4*ct)}, v8, {sr(SRD_D)}, s59 offen offset:{1024*i+256*ct}{NT(OPT['nt_wo'])}")
    stamp(a, 9)


def wgt_down(a):
    done = f"Ldn_done{uid()}"
    a(f"s_cmp_ge_u32 s{S_IDX}, 112")
    a(f"s_cbranch_scc1 {done}")
    a("v_bfe_u32 v5, v1, 3, 1")
    a("v_mul_u32_u24 v5, 28672, v5")
    a("v_lshl_add_u32 v5, v3, 4, v5")
    a(f"s_lshl_b32 s54, s{S_IDX}, 4")
    a("s_lshl_b32 s55, s63, 3")
    a("s_add_u32 s54, s54, s55")
    a("s_lshl_b32 s54, s54, 3")
    srd(a, SRD_A, P_WS, 4 * 2 * 2 * 1792 * 8, WS_GU)
    G = 64
    sp = Spin(a)
    sp.begin()
    a("s_mov_b32 s55, s54")
    for rq in range(4):
        for mat in range(2):
            a(f"buffer_load_dwordx4 {vr(G+8*rq+4*mat)}, v5, {sr(SRD_A)}, s55 offen sc1")
            if not (rq == 3 and mat == 1):
                a("s_add_u32 s55, s55, %d" % (1792 * 8 if mat == 0 else 3 * 1792 * 8))
    a("s_waitcnt vmcnt(0)")
    tag_check(a, [G + 1 + 2 * k for k in range(16)], 10, 11)
    sp.end()
    for k in (0, 2, 4, 6):
        a(f"v_add_f32 v{G+k}, v{G+k}, v{G+8+k}")
        a(f"v_add_f32 v{G+16+k}, v{G+16+k}, v{G+24+k}")
    for k in (0, 2, 4, 6):
        a(f"v_add_f32 v{G+k}, v{G+k}, v{G+16+k}")
    DUP = 32
    for i in range(2):
        a(f"v_max_f32 v{DUP+i}, 0, v{G+2*i}")
        a(f"v_mul_f32 v{DUP+i}, v{DUP+i}, v{G+4+2*i}")
        a(f"v_cvt_pk_bf16_f32 v{DUP+i}, v{DUP+i}, v{DUP+i}")
    AF = 96
    afrags(a, DUP, 2, MASK, AF)
    ACC = 52
    for i in range(2):
        c = "0" if i == 0 else vr(ACC)
        a(f"v_mfma_f32_16x16x32_bf16 {vr(ACC)}, {vr(AF+4*i)}, {vr(WD_R+4*i)}, {c}")
    a(f"s_lshl_b32 s59, s{S_WAVE}, 10")
    a("v_add_u32 v8, s59, v4")
    a(f"ds_write_b128 v8, {vr(ACC)} offset:{L_REDD}")
    a("s_waitcnt lgkmcnt(0)")
    a("s_barrier")
    a(f"s_cmp_ge_u32 s{S_WAVE}, 4")
    a(f"s_cbranch_scc1 {done}")
    reduceN(a, 8, L_REDD, ACC, 64, n=2, stride=4096)
    srd(a, SRD_E, P_WS, 32 * 112 * 256, WS_YP)
    a("v_lshrrev_b32 v9, 5, v1")
    a(f"v_mul_u32_u24 v9, {16*112*256}, v9")
    a("v_lshrrev_b32 v10, 2, v2")
    a(f"v_mul_u32_u24 v10, {112*256}, v10")
    a("v_add_u32 v9, v9, v10")
    a("v_and_b32 v10, 3, v2")
    a("v_lshl_add_u32 v9, v10, 6, v9")
    a("v_and_b32 v10, 1, v3")
    a("v_lshl_add_u32 v9, v10, 5, v9")
    a(f"s_lshl_b32 s59, s{S_IDX}, 8")
    a(f"s_mul_i32 s57, s62, {4*112*256}")
    a("s_add_u32 s59, s59, s57")
    tagged_store(a, ACC, 64, 9, SRD_E, 59)
    a.label(done)
    stamp(a, 10)


def wgt_post(a):
    if OPT.get("dbg_wait"):
        a("s_waitcnt vmcnt(0)")
    a("v_lshlrev_b32 v7, 8, v1")
    a("s_lshl_b32 s56, s63, 14")
    a(f"s_lshl_b32 s57, s{S_H}, 3")
    a("s_add_u32 s56, s56, s57")
    a("v_lshlrev_b32 v8, 10, v3")
    a("v_lshl_add_u32 v8, v2, 4, v8")
    a(f"s_lshl_b32 s57, s{S_H}, 2")
    a(f"s_add_u32 s57, s57, s{S_QQ}")
    a("s_lshl_b32 s57, s57, 15")
    a("s_lshl_b32 s58, s63, 14")
    a("s_add_u32 s57, s57, s58")
    a("s_lshl_b32 s58, s62, 12")
    a("s_add_u32 s57, s57, s58")
    srd(a, SRD_A, P_WS, 32768, WS_STAT)
    srd(a, SRD_B, P_WS, 4194304, WS_OP)
    a("s_lshl_b32 s60, s62, 6")
    a("v_lshlrev_b32 v12, 4, v3")
    a("v_add_u32 v12, s60, v12")
    a(f"s_lshl_b32 s60, s{S_WAVE}, 10")
    a("v_add_u32 v13, s60, v4")
    a("v_bfe_u32 v14, v1, 3, 1")
    a("v_lshlrev_b32 v15, 9, v14")
    a("v_and_b32 v16, 1, v3")
    a("v_lshl_add_u32 v15, v16, 8, v15")
    a("v_lshrrev_b32 v16, 1, v3")
    a("v_lshl_add_u32 v15, v16, 4, v15")
    a(f"s_lshl_b32 s60, s{S_WAVE}, 5")
    a("v_add_u32 v15, s60, v15")
    a("v_lshl_add_u32 v16, v14, 12, v15")
    a("v_cmp_eq_u32 s[58:59], s63, v14")
    a("v_lshlrev_b32 v5, 6, v1")
    poll_flags(a, 5, 20, nloads=2, second_off=64 * 64)
    stamp(a, 11)
    sp = Spin(a)
    sp.begin()
    a(f"buffer_load_dwordx2 v[18:19], v7, {sr(SRD_A)}, s56 offen sc1")
    a("s_waitcnt vmcnt(0)")
    a("v_max_u32 v20, v18, v19")
    a("v_cmp_eq_u32 vcc, -1, v20")
    sp.end()
    stamp(a, 12)
    OPR = 64
    for i in range(4):
        a(f"buffer_load_dwordx4 {vr(OPR+4*i)}, v8, {sr(SRD_B)}, s57 offen offset:{256*i} sc1")
    a("v_mov_b32 v20, v18")
    allreduce(a, "v_max_f32", [20], [21])
    a("v_sub_f32 v18, v18, v20")
    a("v_exp_f32 v18, v18")
    DUP = 32
    for i in range(4):
        a(f"v_add_u32 v21, {4*i}, v12")
        a(f"ds_bpermute_b32 v{DUP+i}, v21, v18")
    a("v_mul_f32 v19, v19, v18")
    allreduce(a, "v_add_f32", [19], [21])
    a("v_rcp_f32 v19, v19")
    a("s_waitcnt lgkmcnt(0)")
    for i in range(4):
        a(f"v_cndmask_b32 v{DUP+i}, 0, v{DUP+i}, s[58:59]")
    for i in range(4):
        a(f"v_cvt_pk_bf16_f32 v{DUP+i}, v{DUP+i}, v{DUP+i}")
    AF = 80
    afrags(a, DUP, 4, MASK, AF)
    n = uid()
    a(f"s_mov_b32 s{S_SPIN}, {SPIN_MAX}")
    a.label(f"Lopv{n}")
    a("s_waitcnt vmcnt(0)")
    sentinel_check(a, list(range(OPR, OPR + 16)), 20)
    a("s_cmp_eq_u64 vcc, 0")
    a(f"s_cbranch_scc1 Lopd{n}")
    a(f"s_sub_u32 s{S_SPIN}, s{S_SPIN}, 1")
    a(f"s_cmp_eq_u32 s{S_SPIN}, 0")
    a(f"s_cbranch_scc1 Lopd{n}")
    for i in range(4):
        a(f"buffer_load_dwordx4 {vr(OPR+4*i)}, v8, {sr(SRD_B)}, s57 offen offset:{256*i} sc1")
    a(f"s_branch Lopv{n}")
    a.label(f"Lopd{n}")
    stamp(a, 13)
    ACC = 52
    for i in range(4):
        c = "0" if i == 0 else vr(ACC)
        a(f"v_mfma_f32_16x16x32_bf16 {vr(ACC)}, {vr(AF+4*i)}, {vr(OPR+4*i)}, {c}")
    for r in range(4):
        a(f"v_mul_f32 v{ACC+r}, v{ACC+r}, v19")
    a(f"ds_write_b128 v13, {vr(ACC)} offset:{L_R1}")
    a("s_waitcnt lgkmcnt(0)")
    a("s_barrier")
    reduceN(a, 16, L_R1, DUP, 96, n=4)
    for r in range(4):
        a(f"v_cvt_pk_bf16_f32 v{DUP+r}, v{DUP+r}, v{DUP+r}")
    afrags(a, DUP, 4, MASK, AF)
    for i in range(4):
        c = "0" if i == 0 else vr(ACC)
        a(f"v_mfma_f32_16x16x32_bf16 {vr(ACC)}, {vr(AF+4*i)}, {vr(WUV_R+4*i)}, {c}")
    a(f"ds_write_b128 v13, {vr(ACC)} offset:{L_R2}")
    a("s_waitcnt lgkmcnt(0)")
    a("s_barrier")
    reduceN(a, 15, L_R2, DUP, 96, n=8)
    for r in range(4):
        a(f"v_cvt_pk_bf16_f32 v{DUP+r}, v{DUP+r}, v{DUP+r}")
    afrags(a, DUP, 4, MASK, AF)
    A3 = 64
    for i in range(4):
        for ct in range(4):
            c = "0" if i == 0 else vr(A3 + 4 * ct)
            a(f"v_mfma_f32_16x16x32_bf16 {vr(A3+4*ct)}, {vr(AF+4*i)}, {vr(WO_R+16*i+4*ct)}, {c}")
    a(f"v_add_u32 v17, {L_R3}, v13")
    for ct in range(4):
        a(f"ds_write_b128 v17, {vr(A3+4*ct)} offset:{8192*ct}")
    srd(a, SRD_E, P_WS, 32 * 16384, WS_SP)
    a("v_lshrrev_b32 v9, 5, v1")
    a("v_lshlrev_b32 v9, 18, v9")
    a("v_lshrrev_b32 v10, 2, v2")
    a("v_lshl_add_u32 v9, v10, 14, v9")
    a("v_and_b32 v10, 3, v2")
    a("v_lshl_add_u32 v9, v10, 5, v9")
    a("v_and_b32 v10, 1, v3")
    a("v_lshl_add_u32 v9, v10, 4, v9")
    a(f"s_lshl_b32 s59, s{S_IDX}, 7")
    a("s_lshl_b32 s57, s62, 16")
    a("s_add_u32 s59, s59, s57")
    a("s_lshl_b32 s60, s62, 13")
    a(f"s_add_u32 s60, s60, {L_R3}")
    a("v_add_u32 v17, s60, v4")
    a("s_waitcnt lgkmcnt(0)")
    a("s_barrier")
    lab = f"Lpost_done{uid()}"
    a(f"s_cmp_ge_u32 s{S_WAVE}, 4")
    a(f"s_cbranch_scc1 {lab}")
    reduceN(a, 17, 0, ACC, 96, n=8)
    a(f"buffer_store_dwordx4 {vr(ACC)}, v9, {sr(SRD_E)}, s59 offen sc1")
    a.label(lab)
    stamp(a, 14)


LDS_QA = 131072
L_SX = 0
L_PB = 16384
L_MX = 24576
L_LS = 25600
L_OT = 32768
L_FIN = 73728


def att(a):
    S_B = 52
    idx = S_IDX
    a(f"s_lshr_b32 s{S_B}, s{idx}, 6")
    a(f"s_lshr_b32 s54, s{S_WAVE}, 1")
    a(f"s_and_b32 s55, s{S_WAVE}, 1")
    a("v_and_b32 v6, 31, v1")
    a("v_lshrrev_b32 v7, 5, v1")
    a("v_lshlrev_b32 v8, 2, v7")
    a("v_xor_b32 v8, v8, v6")
    a("v_lshlrev_b32 v8, 4, v8")
    a("v_lshl_add_u32 v8, v7, 10, v8")
    a("s_lshl_b32 s56, s54, 15")
    a("s_lshl_b32 s57, s55, 9")
    a("s_add_u32 s56, s56, s57")
    a("s_lshl_b32 s58, s55, 16")
    a("s_lshl_b32 s59, s54, 14")
    a("s_add_u32 s58, s58, s59")
    a(f"s_lshl_b32 s59, s{idx}, 17")
    a("s_waitcnt lgkmcnt(0)")
    a(f"s_load_dword s{S_EPOCH}, s[{P_WS}:{P_WS+1}], {WS_EPOCH}")
    a(f"s_add_u32 s{SRD_A}, s{P_KV}, s59")
    a(f"s_addc_u32 s{SRD_A+1}, s{P_KV+1}, 0")
    a(f"s_mov_b32 s{SRD_A+2}, 131072")
    a(f"s_mov_b32 s{SRD_A+3}, 0x20000")
    for i in range(16):
        ci = ((i & 1) << 3) | ((i >> 1) & 3)
        a(f"s_add_u32 m0, s58, {1024*i}")
        a(f"v_xor_b32 v5, {ci << 4}, v8")
        a(f"buffer_load_dwordx4 v5, {sr(SRD_A)}, s56 offen{NT(OPT['nt_kv'])} lds")
        if OPT.get("kvwin", 0) and i >= OPT["kvwin"]:
            a(f"s_waitcnt vmcnt({OPT['kvwin']})")
        if i < 15:
            a("s_add_u32 s56, s56, 2048")
    srd(a, SRD_F, P_WS, NFLAG * 64, WS_FLAG)
    nofin = f"Latt_nofin{uid()}"
    a(f"s_cmp_ge_u32 s{idx}, 32")
    a(f"s_cbranch_scc1 {nofin}")
    srd(a, SRD_E, P_WS, 32 * 16384, WS_SP)
    for r in range(4):
        a(f"v_mov_b32 v{56+r}, -1")
    a(f"s_lshl_b32 s56, s{idx}, 14")
    a(f"s_lshl_b32 s57, s{S_WAVE}, 11")
    a("s_add_u32 s56, s56, s57")
    a(f"buffer_store_dwordx4 v[56:59], v4, {sr(SRD_E)}, s56 offen sc1")
    a(f"buffer_store_dwordx4 v[56:59], v4, {sr(SRD_E)}, s56 offen offset:1024 sc1")
    a.label(nofin)
    a("v_and_b32 v8, 3, v1")
    a("v_lshlrev_b32 v8, 2, v8")
    a("v_bfe_u32 v9, v1, 2, 2")
    a("v_or_b32 v8, v8, v9")
    a("v_xor_b32 v8, v8, v7")
    a("v_lshlrev_b32 v8, 4, v8")
    a("v_lshl_add_u32 v9, v6, 10, v8")
    a("s_lshl_b32 s56, s55, 9")
    a(f"s_add_u32 s57, s56, {LDS_QA}")
    a("v_add_u32 v9, s57, v9")
    a("s_lshl_b32 s57, s55, 4")
    a("v_xor_b32 v10, s57, v6")
    a("v_lshl_add_u32 v10, v10, 9, v8")
    a("v_add_u32 v10, s58, v10")
    AK, AQ, PA = 16, 24, 32
    for s in range(8):
        a(f"v_xor_b32 v{AK+s}, {32*s}, v10")
        a(f"v_xor_b32 v{AQ+s}, {32*s}, v9")
    a("v_bfe_u32 v11, v1, 2, 2")
    a("v_lshl_add_u32 v12, v7, 2, v11")
    a("v_lshlrev_b32 v12, 9, v12")
    a("v_and_b32 v13, 1, v1")
    a("v_lshl_add_u32 v12, v13, 3, v12")
    a(f"s_lshr_b32 s56, s{S_WAVE}, 2")
    a("s_lshl_b32 s56, s56, 16")
    a(f"s_bfe_u32 s57, s{S_WAVE}, 0x10001")
    a("s_lshl_b32 s57, s57, 8")
    a("s_add_u32 s56, s56, s57")
    a("v_add_u32 v12, s56, v12")
    a("v_bfe_u32 v13, v1, 4, 1")
    a("v_bfe_u32 v14, v1, 1, 1")
    a("v_lshl_add_u32 v13, v13, 1, v14")
    a("v_xor_b32 v13, v13, v7")
    a("s_lshl_b32 s56, s55, 1")
    a("v_xor_b32 v14, s56, v11")
    a("v_lshl_add_u32 v13, v14, 2, v13")
    a(f"v_lshl_add_u32 v{PA}, v13, 4, v12")
    a(f"v_xor_b32 v{PA+1}, 32, v{PA}")
    a(f"v_add_u32 v{PA+1}, 4096, v{PA+1}")
    a(f"v_xor_b32 v{PA+2}, 64, v{PA}")
    a(f"v_xor_b32 v{PA+3}, 64, v{PA+1}")
    a("v_lshlrev_b32 v13, 5, v6")
    a(f"s_lshl_b32 s56, s{S_WAVE}, 2")
    a("v_add_u32 v14, s56, v13")
    a(f"s_lshl_b32 s56, s{S_WAVE}, 11")
    a("v_add_u32 v11, s56, v4")
    a("s_xor_b32 s56, s56, 2048")
    a("v_add_u32 v12, s56, v4")
    a(f"s_lshl_b32 s56, s{S_WAVE}, 10")
    a("v_add_u32 v15, s56, v4")
    a("v_lshlrev_b32 v5, 6, v1")
    stamp(a, 1)
    a("s_waitcnt vmcnt(0) lgkmcnt(0)")
    a(f"s_add_u32 s{S_EPOCH}, s{S_EPOCH}, 1")
    stamp(a, 2)
    KF = 64
    for s in range(16):
        a(f"ds_read_b128 {vr(KF+4*s)}, v{AK+(s&7)} offset:{256*(s>>3)}")
    np_ = f"Latt_np{uid()}"
    a(f"s_cmp_lg_u32 s{S_WAVE}, 0")
    a(f"s_cbranch_scc1 {np_}")
    poll_flags(a, 5, 58, nloads=2, second_off=64 * 64)
    a.label(np_)
    a("s_waitcnt lgkmcnt(0)")
    a("s_barrier")
    stamp(a, 3)
    a(f"s_lshl_b32 s54, s{S_B}, 15")
    a(f"s_add_u32 s{SRD_B}, s{P_WS}, s54")
    a(f"s_addc_u32 s{SRD_B+1}, s{P_WS+1}, 0")
    a(f"s_mov_b32 s{SRD_B+2}, 32768")
    a(f"s_mov_b32 s{SRD_B+3}, 0x20000")
    a(f"s_and_b32 s56, s{S_WAVE}, 3")
    a("s_lshl_b32 s56, s56, 4")
    a(f"s_lshl_b32 s57, s{S_WAVE}, 12")
    a("s_or_b32 s56, s56, s57")
    a(f"s_add_u32 s57, s57, {LDS_QA}")
    for k in range(4):
        a(f"s_add_u32 m0, s57, {1024*k}")
        a(f"s_xor_b32 s59, s56, {(k << 10) | (k << 6)}")
        a("v_xor_b32 v5, s59, v4")
        a(f"buffer_load_dwordx4 v5, {sr(SRD_B)}, 0 offen sc1 lds")
    VF = 128
    for sg_ in range(8):
        for T in range(2):
            for u in range(2):
                reg = VF + (sg_ * 2 + T) * 4 + 2 * u
                a(f"ds_read_b64_tr_b16 v[{reg}:{reg+1}], v{PA+T*2+u} offset:{8192*sg_}")
    a("s_waitcnt vmcnt(0) lgkmcnt(0)")
    a("s_barrier")
    stamp(a, 4)
    QF = 192
    ACC = 36
    for s in range(16):
        a(f"ds_read_b128 {vr(QF+4*s)}, v{AQ+(s&7)} offset:{256*(s>>3)}")
    for s in range(16):
        a(f"s_waitcnt lgkmcnt({15-s})")
        c = "0" if s == 0 else vr(ACC, 16)
        a(f"v_mfma_f32_32x32x16_bf16 {vr(ACC,16)}, {vr(KF+4*s)}, {vr(QF+4*s)}, {c}")
    stamp(a, 5)
    a(f"ds_write_b128 v11, {vr(ACC+8)} offset:{L_SX}")
    a(f"ds_write_b128 v11, {vr(ACC+12)} offset:{L_SX+1024}")
    a("s_waitcnt lgkmcnt(0)")
    a("s_barrier")
    stamp(a, 12)
    a(f"ds_read_b128 {vr(52)}, v12 offset:{L_SX}")
    a(f"ds_read_b128 {vr(56)}, v12 offset:{L_SX+1024}")
    a("s_waitcnt lgkmcnt(1)")
    for r in range(4):
        a(f"v_add_f32 v{ACC+r}, v{ACC+r}, v{52+r}")
    a("s_waitcnt lgkmcnt(0)")
    for r in range(4, 8):
        a(f"v_add_f32 v{ACC+r}, v{ACC+r}, v{52+r}")
    a(f"v_max3_f32 v52, v{ACC}, v{ACC+1}, v{ACC+2}")
    a(f"v_max3_f32 v53, v{ACC+3}, v{ACC+4}, v{ACC+5}")
    a(f"v_max3_f32 v52, v52, v{ACC+6}, v{ACC+7}")
    a("v_max_f32 v52, v52, v53")
    a("v_mov_b32 v53, v52")
    a("v_permlane32_swap_b32 v52, v53")
    a("v_max_f32 v52, v52, v53")
    a(f"ds_write_b32 v14, v52 offset:{L_MX}")
    a("s_waitcnt lgkmcnt(0)")
    a("s_barrier")
    stamp(a, 13)
    a(f"ds_read_b128 {vr(52)}, v13 offset:{L_MX}")
    a(f"ds_read_b128 {vr(56)}, v13 offset:{L_MX+16}")
    a("s_waitcnt lgkmcnt(0)")
    a("v_max3_f32 v52, v52, v53, v54")
    a("v_max3_f32 v56, v56, v57, v58")
    a("v_max3_f32 v52, v52, v55, v59")
    a("v_max_f32 v60, v52, v56")
    for r in range(8):
        a(f"v_sub_f32 v{ACC+r}, v{ACC+r}, v60")
    for r in range(8):
        a(f"v_exp_f32 v{ACC+r}, v{ACC+r}")
    for k in range(4):
        a(f"v_cvt_pk_bf16_f32 v{52+k}, v{ACC+2*k}, v{ACC+2*k+1}")
    a(f"ds_write_b128 v15, {vr(52)} offset:{L_PB}")
    a(f"v_add_f32 v44, v{ACC}, v{ACC+1}")
    a(f"v_add_f32 v45, v{ACC+2}, v{ACC+3}")
    a(f"v_add_f32 v46, v{ACC+4}, v{ACC+5}")
    a(f"v_add_f32 v47, v{ACC+6}, v{ACC+7}")
    a("v_add_f32 v44, v44, v45")
    a("v_add_f32 v46, v46, v47")
    a("v_add_f32 v44, v44, v46")
    a("v_mov_b32 v45, v44")
    a("v_permlane32_swap_b32 v44, v45")
    a("v_add_f32 v44, v44, v45")
    a(f"ds_write_b32 v14, v44 offset:{L_LS}")
    a("s_waitcnt lgkmcnt(0)")
    a("s_barrier")
    stamp(a, 6)
    PF = 192
    for sg_ in range(8):
        a(f"ds_read_b128 {vr(PF+4*sg_)}, v4 offset:{L_PB + 1024*sg_}")
    a(f"ds_read_b128 {vr(36)}, v13 offset:{L_LS}")
    a(f"ds_read_b128 {vr(40)}, v13 offset:{L_LS+16}")
    O = 64
    for sg_ in range(8):
        a(f"s_waitcnt lgkmcnt({9 - sg_})")
        for T in range(2):
            c = "0" if sg_ == 0 else vr(O + 16 * T, 16)
            a(f"v_mfma_f32_32x32x16_bf16 {vr(O+16*T,16)}, {vr(VF+(sg_*2+T)*4)}, {vr(PF+4*sg_)}, {c}")
    srd(a, SRD_C, P_WS, 4194304, WS_OP)
    srd(a, SRD_D, P_WS, 32768, WS_STAT)
    a("s_waitcnt lgkmcnt(0)")
    a("v_add_f32 v36, v36, v37")
    a("v_add_f32 v38, v38, v39")
    a("v_add_f32 v40, v40, v41")
    a("v_add_f32 v42, v42, v43")
    a("v_add_f32 v36, v36, v38")
    a("v_add_f32 v40, v40, v42")
    a("v_add_f32 v61, v36, v40")
    a(f"s_mul_i32 s56, s{S_WAVE}, 4608")
    a(f"s_add_u32 s56, s56, {L_OT}")
    a("v_mul_u32_u24 v16, 144, v6")
    a("v_lshl_add_u32 v16, v7, 3, v16")
    a("v_add_u32 v16, s56, v16")
    a("v_lshrrev_b32 v17, 3, v1")
    a("v_mul_u32_u24 v18, 144, v17")
    a("v_and_b32 v19, 7, v1")
    a("v_lshl_add_u32 v18, v19, 4, v18")
    a("v_add_u32 v18, s56, v18")
    a("v_lshlrev_b32 v17, 17, v17")
    a("v_lshl_add_u32 v17, v19, 4, v17")
    a(f"s_lshr_b32 s56, s{S_WAVE}, 1")
    a("s_lshl_b32 s56, s56, 15")
    a("s_lshl_b32 s57, s55, 7")
    a("s_add_u32 s56, s56, s57")
    a(f"s_lshl_b32 s57, s{idx}, 8")
    a("s_add_u32 s56, s56, s57")
    ns = f"Latt_ns{uid()}"
    a(f"s_cmp_lg_u32 s{S_WAVE}, 0")
    a(f"s_cbranch_scc1 {ns}")
    a("v_lshlrev_b32 v19, 3, v6")
    a("s_mov_b32 exec_hi, 0")
    a(f"buffer_store_dwordx2 v[60:61], v19, {sr(SRD_D)}, s57 offen sc1")
    a("s_mov_b64 exec, -1")
    a.label(ns)
    stamp(a, 7)
    for T in range(2):
        for g in range(4):
            r0 = O + 16 * T + 4 * g
            a(f"v_cvt_pk_bf16_f32 v{r0}, v{r0}, v{r0+1}")
            a(f"v_cvt_pk_bf16_f32 v{r0+1}, v{r0+2}, v{r0+3}")
            a(f"ds_write_b64 v16, v[{r0}:{r0+1}] offset:{64*T+16*g}")
    a("s_waitcnt lgkmcnt(0)")
    for k in range(4):
        a(f"ds_read_b128 {vr(96+4*k)}, v18 offset:{8*144*k}")
    for k in range(4):
        a(f"s_waitcnt lgkmcnt({3-k})")
        a(f"buffer_store_dwordx4 {vr(96+4*k)}, v17, {sr(SRD_C)}, s56 offen sc1")
        if k < 3:
            a("s_add_u32 s56, s56, 1048576")
    stamp(a, 8)


def final(a):
    idx = S_IDX
    a("v_lshrrev_b32 v7, 4, v1")
    a("v_lshlrev_b32 v8, 8, v7")
    a("v_lshl_add_u32 v8, v2, 4, v8")
    a(f"s_mul_i32 s53, s{idx}, {112*256}")
    a(f"s_mul_i32 s54, s{S_WAVE}, {14*256}")
    a("s_add_u32 s53, s53, s54")
    a(f"s_lshl_b32 s56, s{idx}, 14")
    a(f"s_lshl_b32 s57, s{S_WAVE}, 11")
    a("s_add_u32 s56, s56, s57")
    srd(a, SRD_A, P_WS, 32 * 16384, WS_SP)
    srd(a, SRD_B, P_WS, 32 * 112 * 256, WS_YP)
    srd(a, SRD_C, P_X, 2048)
    a("v_and_b32 v26, 7, v1")
    a("v_lshlrev_b32 v27, 1, v1")
    a(f"s_lshl_b32 s55, s{idx}, 6")
    a(f"buffer_load_ushort v24, v27, {sr(SRD_C)}, s55 offen")
    YR = 40
    sp = Spin(a)
    sp.begin()
    for k in range(3):
        a(f"buffer_load_dwordx4 {vr(YR+4*k)}, v4, {sr(SRD_B)}, s53 offen offset:{1024*k} sc1")
    a(f"v_mov_b32 v{YR+12}, 0")
    a(f"v_mov_b32 v{YR+13}, s{S_EPOCH}")
    a(f"v_mov_b32 v{YR+14}, 0")
    a(f"v_mov_b32 v{YR+15}, s{S_EPOCH}")
    a("s_mov_b32 exec_hi, 0")
    a(f"buffer_load_dwordx4 {vr(YR+12)}, v4, {sr(SRD_B)}, s53 offen offset:3072 sc1")
    a("s_mov_b64 exec, -1")
    a("s_waitcnt vmcnt(0)")
    tag_check(a, [YR + 1 + 2 * k for k in range(8)], 28, 29)
    sp.end()
    a(f"v_add_f32 v16, v{YR}, v{YR+4}")
    a(f"v_add_f32 v17, v{YR+2}, v{YR+6}")
    a(f"v_add_f32 v18, v{YR+8}, v{YR+12}")
    a(f"v_add_f32 v19, v{YR+10}, v{YR+14}")
    a("v_add_f32 v16, v16, v18")
    a("v_add_f32 v17, v17, v19")
    for sw in (16, 32):
        a("v_mov_b32 v18, v16")
        a("v_mov_b32 v19, v17")
        a(f"v_permlane{sw}_swap_b32 v16, v18")
        a(f"v_permlane{sw}_swap_b32 v17, v19")
        a("v_add_f32 v16, v16, v18")
        a("v_add_f32 v17, v17, v19")
    a(f"s_lshl_b32 s57, s{S_WAVE}, 8")
    a(f"s_add_u32 s57, s57, {L_FIN + 128}")
    a("v_lshl_add_u32 v25, v2, 3, s57")
    a("s_mov_b64 exec, 0xffff")
    a("ds_write_b64 v25, v[16:17]")
    a("s_mov_b64 exec, -1")
    stamp(a, 9)
    sp = Spin(a)
    sp.begin()
    a(f"buffer_load_dwordx4 v[8:11], v4, {sr(SRD_A)}, s56 offen sc1")
    a(f"buffer_load_dwordx4 v[12:15], v4, {sr(SRD_A)}, s56 offen offset:1024 sc1")
    a("s_waitcnt vmcnt(0)")
    sentinel_check(a, list(range(8, 16)), 28)
    sp.end()
    stamp(a, 10)
    for r in range(4):
        a(f"v_add_f32 v{8+r}, v{8+r}, v{12+r}")
    regs = [8, 9, 10, 11]
    tm = [32 + k for k in range(4)]
    for r in regs:
        a(f"v_add_f32_dpp v{r}, v{r}, v{r} row_ror:8 row_mask:0xf bank_mask:0xf")
    for sw in (16, 32):
        for r, t in zip(regs, tm):
            a(f"v_mov_b32 v{t}, v{r}")
        for r, t in zip(regs, tm):
            a(f"v_permlane{sw}_swap_b32 v{r}, v{t}")
        for r, t in zip(regs, tm):
            a(f"v_add_f32 v{r}, v{r}, v{t}")
    a(f"s_lshl_b32 s56, s{S_WAVE}, 8")
    a(f"s_add_u32 s56, s56, {L_FIN}")
    a("v_lshl_add_u32 v25, v26, 4, s56")
    a("s_mov_b64 exec, 0xff")
    a("ds_write_b128 v25, v[8:11]")
    a("s_mov_b64 exec, -1")
    a("s_waitcnt lgkmcnt(0)")
    a("s_barrier")
    lab = f"Lfin_done{uid()}"
    a(f"s_cmp_lg_u32 s{S_WAVE}, 0")
    a(f"s_cbranch_scc1 {lab}")
    a("v_lshlrev_b32 v25, 2, v1")
    a(f"v_add_u32 v25, {L_FIN}, v25")
    for k in range(8):
        a(f"ds_read_b32 v{8+k}, v25 offset:{256*k}")
    srd(a, SRD_D, P_OUT, 2048)
    a("s_waitcnt lgkmcnt(0)")
    a("v_add_f32 v8, v8, v9")
    a("v_add_f32 v10, v10, v11")
    a("v_add_f32 v12, v12, v13")
    a("v_add_f32 v14, v14, v15")
    a("v_add_f32 v8, v8, v10")
    a("v_add_f32 v12, v12, v14")
    a("v_add_f32 v8, v8, v12")
    a("v_mov_b32 v9, v8")
    a("v_permlane32_swap_b32 v8, v9")
    a(f"v_mul_f32 v10, {f2u(-1.4426950408889634)}, v9")
    a("v_exp_f32 v10, v10")
    a("v_add_f32 v10, 1.0, v10")
    a("v_rcp_f32 v10, v10")
    a("v_mul_f32 v9, v9, v10")
    a("v_lshlrev_b32 v24, 16, v24")
    a("v_fma_f32 v8, v8, v9, v24")
    a("v_cvt_pk_bf16_f32 v8, v8, v8")
    a("s_mov_b32 exec_hi, 0")
    a(f"buffer_store_short v8, v27, {sr(SRD_D)}, s55 offen")
    a("s_mov_b64 exec, -1")
    a(f"s_cmp_lg_u32 s{idx}, 0")
    a(f"s_cbranch_scc1 {lab}")
    srd(a, SRD_E, P_WS, 64, WS_EPOCH)
    a(f"v_mov_b32 v8, s{S_EPOCH}")
    a("v_mov_b32 v9, 0")
    a("s_mov_b64 exec, 1")
    a(f"buffer_store_dword v8, v9, {sr(SRD_E)}, 0 offen sc1")
    a("s_mov_b64 exec, -1")
    a.label(lab)
    stamp(a, 11)


def body(a):
    stamp_init(a)
    stamp(a, 0)
    a("s_load_dwordx16 s[4:19], s[0:1], 0")
    a("s_load_dwordx8 s[20:27], s[0:1], 64")
    a("s_load_dwordx2 s[28:29], s[0:1], 96")
    a("s_cmp_ge_u32 s2, 256")
    a("s_cbranch_scc1 Lend")
    a("s_and_b32 s54, s2, 7")
    a("s_lshr_b32 s55, s2, 4")
    a("s_lshl_b32 s55, s55, 3")
    a(f"s_or_b32 s{S_IDX}, s54, s55")
    a("v_lshrrev_b32 v2, 6, v0")
    a("v_and_b32 v1, 63, v0")
    a(f"v_readfirstlane_b32 s{S_WAVE}, v2")
    a("v_and_b32 v2, 15, v1")
    a("v_lshrrev_b32 v3, 4, v1")
    a("v_lshlrev_b32 v4, 4, v1")
    a("s_bitcmp1_b32 s2, 3")
    a("s_cbranch_scc1 Latt")
    a(f"s_and_b32 s{S_H}, s{S_IDX}, 7")
    a(f"s_lshr_b32 s54, s{S_IDX}, 5")
    a(f"s_lshl_b32 s54, s54, 3")
    a(f"s_add_u32 s{S_H}, s{S_H}, s54")
    a(f"s_lshr_b32 s{S_QQ}, s{S_IDX}, 3")
    a(f"s_and_b32 s{S_QQ}, s{S_QQ}, 3")
    wgt_q(a)
    wgt_gu(a)
    wgt_down(a)
    wgt_post(a)
    stamp_flush(a)
    a("s_endpgm")
    a.label("Latt")
    att(a)
    a(f"s_cmp_ge_u32 s{S_IDX}, 32")
    a("s_cbranch_scc1 Latt_end")
    final(a)
    a.label("Latt_end")
    stamp_flush(a)
    a.label("Lend")


def main(out):
    a = Asm()
    name = NAME + "_kernel"
    a.raw("; @launch grid=(256,1,1) block=(512,1,1) lds=163840")
    a.raw('.amdgcn_target "amdgcn-amd-amdhsa--gfx950"')
    a.raw(".text")
    a.raw(f".globl {name}")
    a.raw(".p2align 8")
    a.raw(f".type {name},@function")
    a.raw(f"{name}:")
    body(a)
    a("s_endpgm")
    a.raw('.section .rodata,"a"')
    a.raw(".p2align 6")
    a.raw(f""".amdhsa_kernel {name}
  .amdhsa_next_free_vgpr 256
  .amdhsa_next_free_sgpr 102
  .amdhsa_accum_offset 256
  .amdhsa_group_segment_fixed_size 0
  .amdhsa_kernarg_size 104
  .amdhsa_user_sgpr_count 2
  .amdhsa_user_sgpr_kernarg_segment_ptr 1
  .amdhsa_system_sgpr_workgroup_id_x 1
.end_amdhsa_kernel""")
    open(out, "w").write(a.text())
    print("wrote", out, "nops inserted:", a.nops_inserted)


if __name__ == "__main__":
    out = sys.argv[1] if len(sys.argv) > 1 else "p2.s"
    for kv in sys.argv[2:]:
        k, v = kv.split("=")
        OPT[k] = int(v)
    main(out)
```
